```python
import torch

def _softmax(x, axis=-1):
    return torch.softmax(x, dim=axis)
def _gelu(x):
    return torch.nn.functional.gelu(x, approximate="tanh")
def _silu(x):
    return torch.nn.functional.silu(x)
def _sigmoid(x):
    return torch.sigmoid(x)
def _layernorm(x, axis=-1, eps=1e-5):
    m = x.mean(dim=axis, keepdim=True)
    v = x.var(dim=axis, keepdim=True, unbiased=False)
    return (x - m) / torch.sqrt(v + eps)
def _scatter_add(tgt, idx, src, axis=0):
    return tgt.clone().index_add_(axis, idx, src)
def _segment_sum(src, seg, n):
    out = torch.zeros((n,) + src.shape[1:], dtype=src.dtype)
    return out.index_add_(0, seg, src)
def _pad(x, pw):
    flat = tuple(v for pair in reversed(pw) for v in pair)
    return torch.nn.functional.pad(x, flat)

kernel_name = 'gated_mix__linear_kernel_hedgehog__compressed_kv_cla__prompt'

def setup_inputs():

    _w = (lambda a: (lambda t: t.to(torch.bfloat16) if t.is_floating_point() else t)(torch.as_tensor(a)))
    def _A_setup():
        B, S, D, H = 1, 2048, 1024, 32
        Dh = D // H
        return {
            "x": _w((lambda *s: torch.randn(*s, dtype=torch.bfloat16) * 0.05)(B, S, D)),
            "wqkv": _w((lambda *s: torch.randn(*s, dtype=torch.bfloat16) * 1.6)(D, 3 * D)),
            "w_phi": _w((lambda *s: torch.randn(*s, dtype=torch.bfloat16) * 1.6)(H, Dh, Dh) * (Dh ** -0.5)),
            "wo": _w((lambda *s: torch.randn(*s, dtype=torch.bfloat16) * 0.05)(D, D)),
        }
    _A_in = _A_setup()

    def _B_setup():
        B, H, Sq, Sk, D, M = 1, 32, 2048, 2048, 128, 1024
        Dc = 4 * D
        return {
            "x": _w((lambda *s: torch.randn(*s, dtype=torch.bfloat16) * 0.05)(B, Sq, M)),
            "c_kv": _w((lambda *s: torch.randn(*s, dtype=torch.bfloat16) * 0.8)(B, Sk, Dc)),
            "w_q": _w((lambda *s: torch.randn(*s, dtype=torch.bfloat16) * 6.4)(M, H, D) * (M ** -0.5)),
            "w_uk": _w((lambda *s: torch.randn(*s, dtype=torch.bfloat16) * 6.4)(Dc, H, D) * (Dc ** -0.5)),
            "w_uv": _w((lambda *s: torch.randn(*s, dtype=torch.bfloat16) * 0.8)(Dc, H, D) * (Dc ** -0.5)),
            "w_o": _w((lambda *s: torch.randn(*s, dtype=torch.bfloat16) * 0.8)(H, D, M) * ((H * D) ** -0.5)),
        }
    _B_in = _B_setup()

    return {
        "A_x": _A_in["x"],
        "A_wqkv": _A_in["wqkv"],
        "A_w_phi": _A_in["w_phi"],
        "A_wo": _A_in["wo"],
        "B_x": _B_in["x"],
        "B_c_kv": _B_in["c_kv"],
        "B_w_q": _B_in["w_q"],
        "B_w_uk": _B_in["w_uk"],
        "B_w_uv": _B_in["w_uv"],
        "B_w_o": _B_in["w_o"],
        "gate_w": _w((lambda *s: torch.randn(*s, dtype=torch.bfloat16) * 0.05)(1024) * 16.0),
    }

def reference(A_x, A_wqkv, A_w_phi, A_wo, B_x, B_c_kv, B_w_q, B_w_uk, B_w_uv, B_w_o, gate_w):
    def _A_ref(x, wqkv, w_phi, wo):
        B, S, D = x.shape
        H = 32; Dh = D // H
        qkv = (lambda x, *d: x.permute(*d))((x @ wqkv).reshape(B, S, 3, H, Dh), 2, 0, 3, 1, 4)
        q, k, v = qkv[0], qkv[1], qkv[2]
        pq = torch.einsum("bhsd,hdf->bhsf", q, w_phi)
        pk = torch.einsum("bhsd,hdf->bhsf", k, w_phi)
        phi_q = torch.concatenate([_softmax(pq, axis=-1), _softmax(-pq, axis=-1)], axis=-1)
        phi_k = torch.concatenate([_softmax(pk, axis=-1), _softmax(-pk, axis=-1)], axis=-1)
        kv = torch.einsum("bhsf,bhsd->bhfd", phi_k, v)
        z  = torch.einsum("bhsf->bhf", phi_k)
        num = torch.einsum("bhqf,bhfd->bhqd", phi_q, kv)
        den = torch.einsum("bhqf,bhf->bhq", phi_q, z)[..., None] + 1e-6
        o = num / den
        return (lambda x, *d: x.permute(*d))(o, 0, 2, 1, 3).reshape(B, S, D) @ wo

    def _B_ref(x, c_kv, w_q, w_uk, w_uv, w_o):
        B, Sq, M = x.shape[0], x.shape[1], x.shape[2]
        Sk = c_kv.shape[1]
        H, D = w_q.shape[1], w_q.shape[2]
        q = torch.einsum("bqm,mhd->bhqd", x, w_q)
        k = torch.einsum("bkc,chd->bhkd", c_kv, w_uk)
        v = torch.einsum("bkc,chd->bhkd", c_kv, w_uv)
        scores = torch.einsum("bhqd,bhkd->bhqk", q, k) * (D ** -0.5)
        off = Sk - Sq
        qi = torch.arange(Sq)[:, None]
        kj = torch.arange(Sk)[None, :]
        cmask = kj <= (qi + off)
        scores = torch.where(cmask[None, None], scores, -1e9)
        p = _softmax(scores, axis=-1)
        ctx = torch.einsum("bhqk,bhkd->bhqd", p, v)
        return torch.einsum("bhqd,hdm->bqm", ctx, w_o)

    x = A_x
    g = _sigmoid((x * gate_w).sum(-1, keepdims=True))
    a = _A_ref(x, A_wqkv, A_w_phi, A_wo)
    b = _B_ref(x, B_c_kv, B_w_q, B_w_uk, B_w_uv, B_w_o)
    return g * a + (1 - g) * b
```

```python
class K:
    def __init__(self, name, vgpr=256, accum=256, sgpr=102):
        self.name = name; self.lines = []; self.vgpr = vgpr; self.accum = accum; self.sgpr = sgpr
        self.nlab = 0
    def __call__(self, s):
        for l in s.split("\n"):
            l = l.strip()
            if l: self.lines.append("    " + l if not l.endswith(":") else l)
        return self
    def label(self, base="L"):
        self.nlab += 1
        return "%s_%s_%d" % (self.name[:12], base, self.nlab)
    def text(self):
        n = self.name
        return ("\n.text\n.globl %s\n.p2align 8\n.type %s,@function\n%s:\n" % (n, n, n)) + "\n".join(self.lines) + "\n    s_endpgm\n"
    def desc(self):
        return (".section .rodata,\"a\"\n.p2align 6\n.amdhsa_kernel %s\n  .amdhsa_next_free_vgpr %d\n  .amdhsa_next_free_sgpr %d\n"
                "  .amdhsa_accum_offset %d\n  .amdhsa_group_segment_fixed_size 0\n  .amdhsa_kernarg_size 112\n"
                "  .amdhsa_user_sgpr_count 2\n  .amdhsa_user_sgpr_kernarg_segment_ptr 1\n  .amdhsa_system_sgpr_workgroup_id_x 1\n"
                "  .amdhsa_float_denorm_mode_32 3\n"
                ".end_amdhsa_kernel\n") % (self.name, self.vgpr, self.sgpr, self.accum)

def emit_file(path, kernels_launch, header=""):
    out = [header.rstrip("\n")] if header else []
    for k, g, b, lds in kernels_launch:
        out.append("; @launch kernel=%s grid=(%d,1,1) block=(%d,1,1) lds=%d" % (k.name, g, b, lds))
    out.append('.amdgcn_target "amdgcn-amd-amdhsa--gfx950"')
    seen = []
    for k, *_ in kernels_launch:
        if k not in seen: seen.append(k)
    for k in seen: out.append(k.text())
    for k in seen: out.append(k.desc())
    open(path, "w").write("\n".join(out))

def srd(k, d, b, nbytes):
    k("s_mov_b32 s%d, s%d\ns_and_b32 s%d, s%d, 0xffff\ns_mov_b32 s%d, 0x%x\ns_mov_b32 s%d, 0x20000" % (d, b, d+1, b+1, d+2, nbytes, d+3))
```

```python
from asmlib import *
import hazard, struct
def f32(x): return "0x%08x" % struct.unpack("<I", struct.pack("<f", x))[0]
LOG2E = 1.4426950408889634
WS_KV   = 0x0000000
WS_Q    = 0x2000000
WS_PHIQ = 0x3000000
WS_KVP  = 0x3800000
WS_G    = 0x3B00000
WS_CTX  = 0x4000000
WS_BYTES = 0x10000000
BIGOFF = 0x40000000

class Lgkm:
    def __init__(self, init=()): self.q = list(init)
    def issue(self, tag): self.q.append(tag)
    def need(self, tags):
        idx = [n for n, t in enumerate(self.q) if t in tags]
        if not idx: return None
        last = max(idx)
        rem = len(self.q) - 1 - last
        self.q = self.q[last+1:]
        return "s_waitcnt lgkmcnt(%d)" % min(rem, 15) if rem <= 15 else self._clamp(rem)
    def _clamp(self, rem):
        self.q = self.q[-15:]
        return "s_waitcnt lgkmcnt(15)"
    def drain(self): self.q = []

def vr(b, n=4, f="v"): return "%s[%d:%d]" % (f, b, b+n-1)

def finish(k):
    rep = []
    k.lines = hazard.fix(k.lines, report=rep)
    pr = hazard.check_edges(k.lines)
    for p in pr: print("EDGE HAZARD", k.name, p)
    return rep

def code_prefetch(k, nbytes, vtmp, lab):
    k("s_getpc_b64 s[90:91]")
    k("v_and_b32 v%d, 63, v0\nv_lshlrev_b32 v%d, 7, v%d" % (vtmp, vtmp, vtmp))
    n = (nbytes + 8191)//8192
    for i in range(n):
        k("global_load_dword v%d, v%d, s[90:91]" % (vtmp+1, vtmp))
        if i + 1 < n: k("s_add_u32 s90, s90, 8192\ns_addc_u32 s91, s91, 0")
    return n

STAMP_OFF = 0x8000000
class Stamps:
    def __init__(self, k, on, v=62): self.k = k; self.on = on; self.n = 0; self.v = v
    def __call__(self):
        if not self.on: return
        k = self.k
        k("s_memtime s[92:93]\ns_memrealtime s[94:95]\ns_waitcnt lgkmcnt(0)\nv_writelane_b32 v%d, s92, %d\nv_writelane_b32 v%d, s94, %d" % (self.v+1, 2*self.n, self.v+1, 2*self.n+1))
        self.n += 1
    def store(self, srdb, swave, kidx=0):
        if not self.on: return
        k = self.k
        k("s_lshl_b32 s92, s2, 2\ns_add_u32 s92, s92, s%d\ns_lshl_b32 s92, s92, 8\ns_add_u32 s92, s92, 0x%x" % (swave, STAMP_OFF + kidx*0x40000))
        v = self.v
        k("v_and_b32 v%d, 63, v0\nv_lshlrev_b32 v%d, 2, v%d\nbuffer_store_dword v%d, v%d, s[%d:%d], s92 offen" % (v, v, v, v+1, v, srdb, srdb+3))
```

```python
import re
_reg_re = re.compile(r"^(-|abs\()?\s*([vas])(\d+)\)?$")
_rng_re = re.compile(r"^(-)?([vas])\[(\d+):(\d+)\]$")
TRANS = ("v_exp_f32", "v_log_f32", "v_rcp_f32", "v_rsq_f32", "v_sqrt_f32", "v_sin_f32", "v_cos_f32", "v_rcp_iflag_f32")

def regs(tok):
    tok = tok.strip()
    if tok == "vcc": return {("s", "vcc")}
    if tok in ("vcc_lo", "vcc_hi"): return {("s", "vcc")}
    if tok == "exec": return {("s", "exec")}
    if tok == "m0": return {("s", "m0")}
    m = _reg_re.match(tok)
    if m: return {(m.group(2), int(m.group(3)))}
    m = _rng_re.match(tok)
    if m: return {(m.group(2), i) for i in range(int(m.group(3)), int(m.group(4))+1)}
    return set()

class I:
    __slots__ = ("text", "mn", "defs", "uses", "cls", "srcc", "passes", "states", "sdata", "lab")
    def __init__(self, text):
        self.text = text
        t = text.split(";")[0].strip()
        self.lab = t.endswith(":")
        self.defs = set(); self.uses = set(); self.srcc = set(); self.passes = 0; self.states = 1; self.sdata = set()
        if self.lab or not t or t.startswith("."):
            self.mn = ""; self.cls = "none"; self.states = 0; return
        parts = t.split(None, 1)
        mn = parts[0]; self.mn = mn
        ops = []
        if len(parts) > 1:
            raw = [x.strip() for x in parts[1].split(",")]
            for n, x in enumerate(raw):
                ops.append(x.split()[0] if x else x)
            mods = parts[1]
        else:
            mods = ""
        R = [regs(o) for o in ops]
        U = lambda idx: set().union(*[R[i] for i in idx]) if idx else set()
        n = len(ops)
        if mn == "s_nop":
            self.cls = "salu"; self.states = int(ops[0], 0) + 1
        elif mn.startswith("v_mfma"):
            self.cls = "mfma"; self.defs = R[0]; self.uses = U([1, 2, 3]); self.srcc = R[3]
            self.passes = 8 if "32x32x16" in mn else 4
        elif mn.startswith("v_"):
            self.cls = "valu"
            base = re.sub(r"_(e32|e64|dpp|sdwa)$", "", mn)
            if base.startswith("v_permlane") :
                self.defs = U([0, 1]); self.uses = U([0, 1])
            elif base.startswith("v_cmpx"):
                self.defs = R[0] | {("s", "exec")}; self.uses = U(range(1, n))
            elif base in ("v_add_co_u32", "v_sub_co_u32", "v_addc_co_u32", "v_subb_co_u32"):
                self.defs = U([0, 1]); self.uses = U(range(2, n))
            else:
                self.defs = R[0]; self.uses = U(range(1, n))
                if base.startswith(("v_fmac", "v_dot2c", "v_mac")) or "_dpp" in mn: self.uses |= R[0]
        elif mn.startswith("ds_read") or mn.startswith("ds_bpermute") or mn.startswith("ds_swizzle"):
            self.cls = "ds"; self.defs = R[0]; self.uses = U(range(1, n))
        elif mn.startswith("ds_"):
            self.cls = "ds"; self.uses = U(range(n))
        elif mn.startswith("buffer_load") or mn.startswith("global_load"):
            self.cls = "vmem"
            if re.search(r"\blds\b", mods):
                self.uses = U(range(n)) | {("s", "m0")}
            else:
                self.defs = R[0]; self.uses = U(range(1, n))
        elif mn.startswith("buffer_store") or mn.startswith("global_store") or mn.startswith("buffer_atomic") or mn.startswith("global_atomic"):
            self.cls = "vmem"; self.uses = U(range(n))
            d = R[0] if mn.startswith("buffer") else R[1]
            if "x4" in mn or "x3" in mn: self.sdata = d
            if "atomic" in mn and "sc0" in mods: self.defs = R[0]
        elif mn.startswith("buffer_"):
            self.cls = "vmem"
        elif mn.startswith("s_"):
            self.cls = "salu"
            if mn.startswith(("s_cmp", "s_bitcmp", "s_cbranch", "s_branch", "s_waitcnt", "s_barrier", "s_setprio", "s_endpgm", "s_sleep", "s_setpc")):
                self.uses = U(range(n))
            else:
                self.defs = R[0] if n else set(); self.uses = U(range(1, n))
        else:
            raise ValueError("unknown instr " + text)

def isvg(s): return {r for r in s if r[0] in "va"}
def issg(s): return {r for r in s if r[0] == "s"}

def need(p, c):
    w = 0
    base_c = re.sub(r"_(e32|e64|dpp|sdwa)$", "", c.mn)
    if p.cls == "valu":
        vd = isvg(p.defs); sd = issg(p.defs)
        if vd:
            if c.cls == "mfma" and vd & c.uses: w = max(w, 2)
            if c.cls == "valu":
                if base_c.startswith("v_permlane") and vd & c.uses: w = max(w, 2)
                if "_dpp" in c.mn and vd & c.uses: w = max(w, 2)
                if base_c in ("v_readfirstlane_b32", "v_readlane_b32") and vd & c.uses: w = max(w, 1)
                if re.sub(r"_(e32|e64)$", "", p.mn) in TRANS and vd & c.uses and base_c not in TRANS: w = max(w, 1)
        if sd:
            if c.cls == "valu" and sd & c.uses: w = max(w, 2)
            if c.cls == "valu" and ("s", "vcc") in sd and base_c.startswith(("v_cndmask", "v_addc", "v_subb")) : w = max(w, 2)
            if c.cls == "vmem" and sd & c.uses: w = max(w, 5)
            if c.cls == "salu" and sd & c.uses: w = max(w, 1)
            if ("s", "exec") in sd and (c.cls == "mfma" or base_c.startswith(("v_permlane", "v_read", "v_write"))): w = max(w, 4)
            if ("s", "exec") in sd and "_dpp" in c.mn: w = max(w, 5)
    if p.cls == "salu" and ("s", "m0") in p.defs and c.cls == "vmem" and ("s", "m0") in c.uses: w = max(w, 1)
    if p.cls == "mfma":
        big = 12 if p.passes == 8 else 8
        ovl = 10 if p.passes == 8 else 6
        if c.cls == "mfma":
            ab = c.uses - c.srcc if not (c.srcc & (c.uses - c.srcc)) else c.uses
            toks = [x.strip().split()[0] for x in c.text.split(";")[0].strip().split(None, 1)[1].split(",")]
            AB = regs(toks[1]) | regs(toks[2])
            if p.defs & AB: w = max(w, big)
            if p.defs & c.srcc:
                if not (p.defs == c.srcc and p.passes == c.passes): w = max(w, ovl)
            elif p.defs & c.defs: w = max(w, big)
        elif c.cls in ("valu", "vmem", "ds"):
            if p.defs & (c.uses | c.defs): w = max(w, big)
        if c.cls == "valu" and p.srcc & c.defs: w = max(w, 7 if p.passes == 8 else 3)
    if p.sdata and (c.defs & p.sdata): w = max(w, 2)
    return w

def fix(lines, window=14, report=None):
    out = []
    for l in lines:
        c = I(l)
        if c.cls == "none":
            out.append(c); continue
        dist = 0; lack = 0
        for p in reversed(out):
            if p.cls == "none": continue
            w = need(p, c)
            if w > dist: lack = max(lack, w - dist)
            dist += p.states
            if dist >= window: break
        if lack:
            if report is not None: report.append((c.text, lack))
            while lack > 0:
                n = min(lack, 16)
                out.append(I("    s_nop %d" % (n-1))); lack -= n
        out.append(c)
    return [i.text for i in out]

def check_edges(lines, window=14):
    ins = [I(l) for l in lines]
    labels = {i.text.strip()[:-1]: n for n, i in enumerate(ins) if i.lab}
    probs = []
    for n, b in enumerate(ins):
        if b.mn.startswith(("s_cbranch", "s_branch")):
            tgt = b.text.split()[-1]
            if tgt not in labels: continue
            pre = []; d = 0; j = n
            while j >= 0 and d < window:
                if ins[j].cls != "none": pre.append(ins[j]); d += ins[j].states
                j -= 1
            post = []; d = 0; j = labels[tgt]
            while j < len(ins) and d < window:
                if ins[j].cls != "none": post.append(ins[j]); d += ins[j].states
                if ins[j].mn == "s_branch": break
                j += 1
            dc = 0
            for c in post:
                dist = dc
                for p in pre:
                    w = need(p, c)
                    if w > dist: probs.append((p.text.strip(), c.text.strip(), w, dist, tgt))
                    dist += p.states
                dc += c.states
    return probs
```

```python
from common import *

XD, WD, XD2, WD2, XA, WA, WB, WPHI = 8, 16, 24, 32, 40, 42, 46, 48
VJ, VG, VR_, VC = 56, 57, 58, 59
XF, WF = 64, 96
NWB = 8
def acc(nt, mt):
    return ("v", 64 + (nt*4+mt)*4) if nt < 12 else ("a", ((nt-12)*4+mt)*4)
def accs(nt, mt):
    f, b = acc(nt, mt); return vr(b, 4, f)

def w_read(part, q, NT, hb):
    ks, nt = divmod(q, NT)
    if part == 1 or nt < 8:
        return WA + (nt & 3), (nt >> 2)*8192 + ks*4096 + hb*512
    cg, seg = divmod(nt-8, 2)
    return WB + seg, ks*8192 + cg*1024 + hb*256

def step(k, lg, part, par, fbase, first, dma, vmw, nextpart, last=False):
    NT = 16 if part == 1 else 14
    NTn = 16 if nextpart == 1 else 14
    NF = 2*NT; NG = 4*NF; D = 6
    fill = [[] for _ in range(NG)]
    def wrd(p, q, nt_, fb, tagpre):
        out = []
        buf = WF + 4*((fb+q) % NWB)
        for hb in range(2):
            a, imm = w_read(p, q, nt_, hb)
            out.append(("lds", "ds_read_b64_tr_b16 a[%d:%d], v%d offset:%d" % (buf+2*hb, buf+2*hb+1, a, imm), (tagpre, "W", q)))
        return out
    def xrd(ks, mt, slot, tagpre):
        b = XF + 16*ks + 4*mt
        return ("lds", "ds_read_b128 a[%d:%d], v%d offset:%d" % (b, b+3, XA+ks, slot*8192 + mt*2048), (tagpre, "X", ks, mt))
    for q in range(NF - D):
        r = wrd(part, q+D, NT, fbase, "c")
        fill[4*q+0].append(r[0]); fill[4*q+2].append(r[1])
    for mt in range(4): fill[4*(2+mt)+1].append(xrd(1, mt, par, "c"))
    wd, xd = dma
    if wd:
        pos = [4*(1 + (n*(NT-2))//len(wd)) + 3 for n in range(len(wd))]
        for n, t in enumerate(wd): fill[pos[n]].append(("raw", t))
    if xd:
        span = NT - 5
        pos = [4*(NT + 0 + (n*span)//len(xd)) + (3 if n % 2 == 0 or span >= len(xd) else 1) for n in range(len(xd))]
        for n, t in enumerate(xd): fill[pos[n]].append(("raw", t))
    bar = 4*(NF-4)
    pre = {}
    if not last:
        rot = ["s_add_u32 s44, s44, 1\ns_cmp_eq_u32 s44, 3", "s_cselect_b32 s43, s48, s49\ns_cselect_b32 s44, 0, s44"]
        rot += ["v_add_u32 v%d, s43, v%d" % (WA+n, WA+n) for n in range(6)]
        g0 = 4*(NF-D)
        for n, t in enumerate(rot): fill[g0 + (n*8)//len(rot)].append(("raw", t))
        pre[bar] = "s_waitcnt lgkmcnt(0) vmcnt(%d)\ns_barrier" % vmw
        nxt = wrd(nextpart, 0, NTn, fbase+NF, "n") + [xrd(0, mt, 1-par, "n") for mt in range(4)]
        for q in range(1, D): nxt += wrd(nextpart, q, NTn, fbase+NF, "n")
        for n, r in enumerate(nxt): fill[bar+n].append(r)
    for g in range(NG):
        q, mt = divmod(g, 4); ks, nt = divmod(q, NT)
        if g in pre:
            k(pre[g]); lg.drain()
        w = lg.need({("c", "W", q), ("c", "X", ks, mt)})
        if w: k(w)
        wf = vr(WF + 4*((fbase+q) % NWB), 4, "a"); xf = vr(XF + 16*ks + 4*mt, 4, "a")
        vtype = (part == 1 and nt >= 8) or (part == 2 and nt >= 12)
        A, B = (xf, wf) if vtype else (wf, xf)
        C = "0" if (first and ks == 0) else accs(nt, mt)
        k("v_mfma_f32_16x16x32_bf16 %s, %s, %s, %s" % (accs(nt, mt), A, B, C))
        for f in fill[g]:
            k(f[1])
            if f[0] == "lds": lg.issue(f[2])
    lg.q = [("c",)+t[1:] for t in lg.q]
    return fbase + NF

def dma_lists(par, nb):
    wd = []
    for n in range(4 + nb):
        t = ""
        if n == 0: t += "s_add_u32 m0, s40, s41\ns_nop 0\n"
        if n == 4: t += "s_add_u32 m0, s40, s42\ns_nop 0\n"
        t += "buffer_load_dwordx4 v%d, s[%d:%d], s%d offen offset:%d lds" % (WD+n, 12 if n < 4 else 16, 15 if n < 4 else 19, 34 if n < 4 else 35, (n % 4)*1024)
        if n == 3: t += "\ns_add_u32 s34, s34, s36"
        if n == 3+nb:
            t += "\ns_add_u32 s35, s35, s37\ns_add_u32 s40, s40, 0x8000\ns_cmp_eq_u32 s40, 0x28000\ns_cselect_b32 s40, 0x10000, s40"
        wd.append(t)
    xd = []
    for n in range(8):
        t = ""
        if n % 4 == 0: t += "s_add_u32 m0, s46, %d\ns_nop 0\n" % (par*8192 + n*1024)
        t += "buffer_load_dwordx4 v%d, s[8:11], s33 offen offset:%d lds" % (XD+n, (n % 4)*1024)
        if n == 7: t += "\ns_add_u32 s33, s33, 128\ns_cmp_eq_u32 s33, 2048\ns_cselect_b32 s33, 0x%x, s33" % BIGOFF
        xd.append(t)
    return wd, xd

def softmax_pm(P, T, out):
    mx, mn, t0, t1 = T, T+1, T+2, T+3
    E = T+4
    L = []
    L += ["v_max3_f32 v%d, v%d, v%d, v%d" % (mx, P, P+1, P+2), "v_min3_f32 v%d, v%d, v%d, v%d" % (mn, P, P+1, P+2)]
    L += ["v_max3_f32 v%d, v%d, v%d, v%d" % (mx, mx, P+3, P+4), "v_min3_f32 v%d, v%d, v%d, v%d" % (mn, mn, P+3, P+4)]
    L += ["v_max3_f32 v%d, v%d, v%d, v%d" % (mx, mx, P+5, P+6), "v_min3_f32 v%d, v%d, v%d, v%d" % (mn, mn, P+5, P+6)]
    L += ["v_max_f32 v%d, v%d, v%d" % (mx, mx, P+7), "v_min_f32 v%d, v%d, v%d" % (mn, mn, P+7)]
    def xred(a, b, opa, opb):
        M = []
        for sw in ("v_permlane16_swap_b32", "v_permlane32_swap_b32"):
            M += ["v_mov_b32 v%d, v%d" % (t0, a), "v_mov_b32 v%d, v%d" % (t1, b)]
            M += ["%s v%d, v%d" % (sw, a, t0), "%s v%d, v%d" % (sw, b, t1)]
            M += ["%s v%d, v%d, v%d" % (opa, a, a, t0), "%s v%d, v%d, v%d" % (opb, b, b, t1)]
        return M
    L += xred(mx, mn, "v_max_f32", "v_min_f32")
    L += ["v_mul_f32 v%d, s50, v%d" % (mx, mx), "v_mul_f32 v%d, s50, v%d" % (mn, mn)]
    for j in range(8):
        L += ["v_fma_f32 v%d, -v%d, s50, v%d" % (E+j, P+j, mn), "v_fma_f32 v%d, v%d, s50, -v%d" % (P+j, P+j, mx)]
    for j in range(8):
        L += ["v_exp_f32 v%d, v%d" % (E+j, E+j), "v_exp_f32 v%d, v%d" % (P+j, P+j)]
    L += ["v_add_f32 v%d, v%d, v%d" % (mx, P, P+1), "v_add_f32 v%d, v%d, v%d" % (mn, E, E+1)]
    for j in range(2, 8):
        L += ["v_add_f32 v%d, v%d, v%d" % (mx, mx, P+j), "v_add_f32 v%d, v%d, v%d" % (mn, mn, E+j)]
    L += xred(mx, mn, "v_add_f32", "v_add_f32")
    L += ["v_rcp_f32 v%d, v%d" % (mx, mx), "v_rcp_f32 v%d, v%d" % (mn, mn)]
    for j in range(8):
        L += ["v_mul_f32 v%d, v%d, v%d" % (P+j, P+j, mx), "v_mul_f32 v%d, v%d, v%d" % (E+j, E+j, mn)]
    for j in range(4):
        L += ["v_cvt_pk_bf16_f32 v%d, v%d, v%d" % (out+j, P+2*j, P+2*j+1)]
    for j in range(4):
        L += ["v_cvt_pk_bf16_f32 v%d, v%d, v%d" % (out+4+j, E+2*j, E+2*j+1)]
    return L

def merge(*lists):
    out = []; n = max(len(l) for l in lists)
    for i in range(n):
        for l in lists:
            if i < len(l): out.append(l[i])
    return out

def gen_k1(name="k1_kernel", prefetch=True, stamps=False):
    k = K(name, vgpr=384, accum=256, sgpr=96)
    k("s_cmp_ge_u32 s2, 256\ns_cbranch_scc1 K1_end")
    st = Stamps(k, stamps)
    st()
    k("s_load_dwordx2 s[24:25], s[0:1], 0")
    k("s_load_dwordx4 s[28:31], s[0:1], 8")
    k("s_load_dwordx4 s[4:7], s[0:1], 40")
    k("s_load_dwordx4 s[60:63], s[0:1], 56")
    k("s_load_dwordx2 s[64:65], s[0:1], 80")
    k("s_load_dwordx2 s[66:67], s[0:1], 104")
    k("v_lshrrev_b32 v1, 6, v0\nv_and_b32 v2, 63, v0")
    k("v_readfirstlane_b32 s52, v1")
    k("s_and_b32 s53, s2, 31\ns_lshr_b32 s54, s2, 5")
    k("v_and_b32 v%d, 15, v2\nv_lshrrev_b32 v%d, 4, v2\nv_bfe_u32 v%d, v2, 2, 2\nv_and_b32 v%d, 3, v2" % (VJ, VG, VR_, VC))
    k("v_lshrrev_b32 v3, 3, v2\nv_and_b32 v4, 7, v2")
    k("s_lshl_b32 s55, s54, 7\ns_lshl_b32 s56, s52, 5\ns_add_u32 s55, s55, s56")
    k("s_sub_u32 s57, 15, s54\ns_lshl_b32 s57, s57, 7\ns_add_u32 s57, s57, s56")
    k("v_lshrrev_b32 v5, 1, v3\nv_xor_b32 v5, v5, v4\nv_xor_b32 v6, 4, v5\nv_lshlrev_b32 v5, 4, v5\nv_lshlrev_b32 v6, 4, v6")
    g = [0, 2, 1, 3]
    for (dst, sh, perm) in ((XD, 10, g), (XD2, 11, [0, 1, 2, 3])):
        for p in range(8):
            srow = 55 if p < 4 else 57
            k("s_add_u32 s58, s%d, %d\ns_lshl_b32 s58, s58, %d\ns_sub_u32 s58, s58, %d" % (srow, 8*perm[p & 3], sh, (p & 3)*1024))
            k("v_lshl_add_u32 v7, v3, %d, v%d\nv_add_u32 v%d, s58, v7" % (sh, 5 + (p & 1), dst+p))
    k("v_bfe_u32 v5, v3, 1, 1\nv_lshlrev_b32 v5, 1, v5\nv_xor_b32 v5, v5, v4\nv_xor_b32 v6, 4, v5")
    k("v_lshlrev_b32 v5, 4, v5\nv_lshlrev_b32 v6, 4, v6")
    k("v_lshl_add_u32 v5, v3, 13, v5\nv_lshl_add_u32 v6, v3, 13, v6")
    k("s_lshl_b32 s58, s53, 8\ns_and_b32 s59, s52, 1\ns_lshl_b32 s68, s59, 7\ns_add_u32 s68, s68, s58")
    for kg in range(8):
        k("s_add_u32 s69, s68, %d\nv_add_u32 v%d, s69, v%d" % (kg*65536 - (kg & 3)*1024, WD+kg, 5 + (kg & 1)))
    k("s_lshr_b32 s68, s52, 1\ns_lshl_b32 s68, s68, 7\ns_add_u32 s68, s68, s58\ns_lshl_b32 s59, s59, 18\ns_add_u32 s68, s68, s59")
    for p in range(4):
        k("s_add_u32 s69, s68, %d\nv_add_u32 v%d, s69, v%d" % (p*65536 - p*1024, WD2+p, 5 + (p & 1)))
    k("v_lshrrev_b32 v5, 2, v2\nv_lshrrev_b32 v6, 5, v2\nv_xor_b32 v6, v6, v%d\nv_lshlrev_b32 v6, 4, v6" % VC)
    k("s_movk_i32 s69, 6144\nv_mad_u32_u24 v5, v5, s69, v6")
    k("s_mul_i32 s68, s52, %d\ns_lshl_b32 s69, s53, 6\ns_add_u32 s68, s68, s69" % (16*6144))
    for cg in range(3):
        k("s_add_u32 s69, s68, %d\nv_add_u32 v%d, s69, v5" % (cg*1024, WD2+4+cg))
    k("v_mov_b32 v%d, 0x%x" % (WD2+7, BIGOFF))
    k("s_lshl_b32 s46, s52, 14")
    k("v_lshrrev_b32 v5, 1, v%d\nv_xor_b32 v5, v5, v%d\nv_xor_b32 v6, 4, v5" % (VJ, VG))
    k("v_lshlrev_b32 v7, 7, v%d\nv_add_u32 v7, s46, v7" % VJ)
    k("v_lshl_add_u32 v%d, v5, 4, v7\nv_lshl_add_u32 v%d, v6, 4, v7" % (XA, XA+1))
    k("v_lshrrev_b32 v5, 1, v%d\nv_and_b32 v6, 1, v%d\nv_lshl_or_b32 v5, v6, 1, v5" % (VR_, VG))
    k("v_lshlrev_b32 v7, 10, v%d\nv_lshl_add_u32 v7, v%d, 7, v7\nv_lshl_add_u32 v7, v%d, 3, v7\nv_add_u32 v7, 0x10000, v7" % (VG, VR_, VC))
    for seg in range(4):
        k("v_xor_b32 v6, %d, v5\nv_lshl_add_u32 v%d, v6, 5, v7" % (seg, WA+seg))
    k("v_lshrrev_b32 v5, 1, v%d\nv_lshlrev_b32 v7, 12, v5\nv_and_b32 v6, 1, v%d" % (VG, VG))
    k("v_lshl_add_u32 v7, v6, 9, v7\nv_lshl_add_u32 v7, v%d, 6, v7" % VR_)
    k("v_and_b32 v5, 1, v%d\nv_lshl_add_u32 v7, v5, 3, v7\nv_add_u32 v7, 0x14000, v7" % VC)
    k("v_and_b32 v5, 2, v%d\nv_xor_b32 v5, v5, v6" % VC)
    k("v_lshl_add_u32 v%d, v5, 4, v7\nv_xor_b32 v5, 1, v5\nv_lshl_add_u32 v%d, v5, 4, v7" % (WB, WB+1))
    k("s_waitcnt lgkmcnt(0)")
    srd(k, 8, 4, 2048*512*2)
    k("s_cmp_lt_u32 s52, 2\ns_cselect_b32 s12, s60, s62\ns_cselect_b32 s13, s61, s63\ns_and_b32 s13, s13, 0xffff\ns_mov_b32 s14, 0x400000\ns_mov_b32 s15, 0x20000")
    k("s_mov_b32 s16, s12\ns_mov_b32 s17, s13\ns_mov_b32 s18, s14\ns_mov_b32 s19, 0x20000")
    srd(k, 20, 66, WS_BYTES)
    k("s_mov_b32 s26, s6\ns_mov_b32 s27, s7")
    k("s_mov_b32 s33, 0\ns_mov_b32 s34, 0\ns_mov_b32 s35, 0\ns_mov_b32 s36, 0x80000\ns_mov_b32 s37, 0x80000")
    k("s_mov_b32 s40, 0x10000\ns_lshl_b32 s41, s52, 13\ns_add_u32 s42, s41, 4096")
    k("s_mov_b32 s44, 0\ns_mov_b32 s48, 0xffff0000\ns_mov_b32 s49, 0x8000\ns_mov_b32 s50, %s" % f32(LOG2E))
    npf = code_prefetch(k, 24576, 104, None) if prefetch else 0
    srd(k, 72, 24, 2048*1024*2); srd(k, 76, 64, 2048); srd(k, 80, 30, 32*32*32*2)
    k("s_lshl_b32 s58, s2, 3\ns_lshl_b32 s59, s52, 1\ns_add_u32 s58, s58, s59\ns_lshl_b32 s70, s58, 2\ns_lshl_b32 s58, s58, 11\ns_add_u32 s59, s58, 2048")
    k("v_lshlrev_b32 v5, 5, v2")
    k("buffer_load_dwordx4 v[64:67], v5, s[72:75], s58 offen\nbuffer_load_dwordx4 v[68:71], v5, s[72:75], s58 offen offset:16")
    k("buffer_load_dwordx4 v[72:75], v5, s[72:75], s59 offen\nbuffer_load_dwordx4 v[76:79], v5, s[72:75], s59 offen offset:16")
    k("buffer_load_dwordx4 v[80:83], v5, s[76:79], 0 offen\nbuffer_load_dwordx4 v[84:87], v5, s[76:79], 0 offen offset:16")
    k("v_lshrrev_b32 v6, 1, v%d\nv_lshlrev_b32 v6, 10, v6\nv_and_b32 v7, 1, v%d\nv_lshl_add_u32 v6, v7, 8, v6\nv_lshl_add_u32 v6, v%d, 1, v6" % (VG, VG, VJ))
    k("s_lshl_b32 s58, s53, 11")
    for ft in range(2):
        for s in range(8):
            k("buffer_load_ushort v%d, v6, s[80:83], s58 offen offset:%d" % (88+ft*8+s, (8*(s >> 2) + (s & 3))*64 + ft*32))
    for par in range(2):
        wd, xd = dma_lists(par, 4)
        for t in wd + xd: k(t)
    for r in range(112, 256): k("v_mov_b32 v%d, 0" % r)
    for r in range(64): k("v_accvgpr_write_b32 a%d, 0" % r)
    k("s_waitcnt vmcnt(32)")
    for ft in range(2):
        for s2_ in range(4):
            k("v_lshl_or_b32 v%d, v%d, 16, v%d" % (WPHI+ft*4+s2_, 88+ft*8+2*s2_+1, 88+ft*8+2*s2_))
    k("v_mov_b32 v5, 0\nv_mov_b32 v6, 0")
    for n in range(8):
        k("v_dot2_f32_bf16 v5, v%d, v%d, v5\nv_dot2_f32_bf16 v6, v%d, v%d, v6" % (64+n, 80+n, 72+n, 80+n))
    k("s_nop 2")
    for sh in ("row_shr:1", "row_shr:2", "row_shr:4", "row_shr:8"):
        k("v_add_f32_dpp v5, v5, v5 %s row_mask:0xf bank_mask:0xf bound_ctrl:0\nv_add_f32_dpp v6, v6, v6 %s row_mask:0xf bank_mask:0xf bound_ctrl:0" % (sh, sh))
    k("v_add_f32_dpp v5, v5, v5 row_bcast:15 row_mask:0xa bank_mask:0xf\nv_add_f32_dpp v6, v6, v6 row_bcast:15 row_mask:0xa bank_mask:0xf")
    k("v_add_f32_dpp v5, v5, v5 row_bcast:31 row_mask:0xc bank_mask:0xf\nv_add_f32_dpp v6, v6, v6 row_bcast:31 row_mask:0xc bank_mask:0xf")
    k("v_mul_f32 v6, s50, v6\nv_mul_f32 v5, s50, v5\nv_exp_f32 v6, -v6\nv_exp_f32 v5, -v5\nv_add_f32 v7, 1.0, v6\nv_add_f32 v6, 1.0, v5\nv_rcp_f32 v7, v7\nv_rcp_f32 v6, v6")
    k("v_cmp_eq_u32 vcc, 63, v2\nv_mov_b32 v5, 0x%x\nv_mov_b32 v3, 0\nv_cndmask_b32 v5, v5, v3, vcc" % BIGOFF)
    k("s_add_u32 s70, s70, 0x%x\nbuffer_store_dwordx2 v[6:7], v5, s[20:23], s70 offen" % WS_G)
    for r in range(64, 112): k("v_mov_b32 v%d, 0" % r)
    k("s_waitcnt vmcnt(17)\ns_barrier")
    lg = Lgkm()
    def init_reads(part):
        NT = 16 if part == 1 else 14
        seq = []
        for q in range(6):
            for hb in range(2):
                a, imm = w_read(part, q, NT, hb)
                buf = WF + 4*q + 2*hb
                seq.append(("ds_read_b64_tr_b16 a[%d:%d], v%d offset:%d" % (buf, buf+1, a, imm), ("c", "W", q)))
            if q == 0:
                for mt in range(4):
                    seq.append(("ds_read_b128 a[%d:%d], v%d offset:%d" % (XF+4*mt, XF+4*mt+3, XA, mt*2048), ("c", "X", 0, mt)))
        for t, tag in seq: k(t); lg.issue(tag)
    st()
    init_reads(1)
    st0 = list(lg.q)
    k("s_mov_b32 s45, 0")
    k("K1_loop1:")
    k("s_cmp_lg_u32 s45, 3\ns_cbranch_scc1 K1_nosw")
    k("s_mov_b32 s8, s24\ns_and_b32 s9, s25, 0xffff\ns_mov_b32 s10, 0x400000")
    k("s_mov_b32 s12, s26\ns_and_b32 s13, s27, 0xffff\ns_mov_b32 s14, 0x800000")
    k("s_mov_b32 s16, s28\ns_and_b32 s17, s29, 0xffff\ns_mov_b32 s18, 0x600000")
    k("s_mov_b32 s33, 0\ns_mov_b32 s34, 0\ns_mov_b32 s35, 0\ns_mov_b32 s37, 0x60000")
    k("s_lshl_b32 s41, s52, 12\ns_add_u32 s42, s41, 16384")
    for n in range(16): k("v_mov_b32 v%d, v%d" % (XD+n, XD2+n))
    k("K1_nosw:")
    fb = 0
    for par in range(2):
        fb = step(k, lg, 1, par, fb, False, dma_lists(par, 4), 16, 1)
    assert lg.q == st0 and fb % NWB == 0
    k("s_add_u32 s45, s45, 1\ns_cmp_lt_u32 s45, 4\ns_cbranch_scc1 K1_loop1")
    st()
    k("s_lshl_b32 s68, s53, 20\ns_lshl_b32 s58, s55, 9\ns_add_u32 s58, s58, s68\ns_lshl_b32 s59, s57, 9\ns_add_u32 s59, s59, s68")
    k("v_and_b32 v5, 1, v%d\nv_lshrrev_b32 v6, 1, v%d" % (VG, VG))
    k("v_and_b32 v7, 7, v%d\nv_lshlrev_b32 v24, 4, v7\nv_lshrrev_b32 v7, 3, v%d\nv_lshl_add_u32 v24, v7, 8, v24" % (VJ, VJ))
    k("v_lshl_add_u32 v24, v6, 9, v24\nv_lshl_add_u32 v24, v5, 10, v24")
    k("v_lshlrev_b32 v25, 4, v%d\nv_lshl_add_u32 v25, v5, 9, v25\nv_lshl_add_u32 v25, v6, 12, v25" % VJ)
    k("v_lshlrev_b32 v26, 4, v%d\nv_lshl_add_u32 v26, v6, 9, v26\nv_lshl_add_u32 v26, v5, 10, v26" % VJ)
    k("s_add_u32 s68, s58, 4096\ns_add_u32 s69, s59, 4096\ns_add_u32 s70, s58, 8192\ns_add_u32 s71, s59, 8192")
    def pack(d, a, b):
        return ["v_cvt_pk_bf16_f32 v%d, v%d, v%d" % (d, a, a+1), "v_cvt_pk_bf16_f32 v%d, v%d, v%d" % (d+1, a+2, a+3),
                "v_cvt_pk_bf16_f32 v%d, v%d, v%d" % (d+2, b, b+1), "v_cvt_pk_bf16_f32 v%d, v%d, v%d" % (d+3, b+2, b+3)]
    for dp in range(4):
        for mt in range(4):
            a = acc(2*dp, mt)[1]; b = acc(2*dp+1, mt)[1]
            for t in pack(a, a, b): k(t)
            so = (58 if mt < 2 else 59) if dp < 2 else (68 if mt < 2 else 69)
            k("buffer_store_dwordx4 %s, v24, s[20:23], s%d offen offset:%d" % (vr(a), so, (dp & 1)*2048 + (mt & 1)*128))
    for dt in range(8):
        for mp in range(2):
            f, a = acc(8+dt, 2*mp)
            if f == "a":
                t0 = 64 + 8*((dt*2+mp) % 8)
                for n in range(8): k("v_accvgpr_read_b32 v%d, a%d" % (t0+n, a+n))
                a = t0
            for t in pack(a, a, a+4): k(t)
            k("buffer_store_dwordx4 %s, v25, s[20:23], s%d offen offset:%d" % (vr(a), 70+mp, (dt >> 1)*1024 + (dt & 1)*256))
    st()
    fb = step(k, lg, 2, 0, fb, True, dma_lists(0, 3), 15+32, 2)
    fb = step(k, lg, 2, 1, fb, False, dma_lists(1, 3), 15, 2)
    st2 = list(lg.q)
    k("s_mov_b32 s45, 0")
    k("K1_loop2:")
    for par in range(2):
        fb = step(k, lg, 2, par, fb, False, dma_lists(par, 3), 15, 2)
    assert lg.q == st2 and fb % NWB == 0
    k("s_add_u32 s45, s45, 1\ns_cmp_lt_u32 s45, 7\ns_cbranch_scc1 K1_loop2")
    st()
    k("s_lshl_b32 s68, s53, 19\ns_add_u32 s68, s68, 0x%x\ns_lshl_b32 s58, s55, 8\ns_add_u32 s58, s58, s68\ns_lshl_b32 s59, s57, 8\ns_add_u32 s59, s59, s68" % WS_Q)
    k("s_add_u32 s68, s58, 4096\ns_add_u32 s69, s59, 4096")
    k("s_mov_b32 s60, %s\ns_mov_b32 s61, s60" % f32(LOG2E * 128 ** -0.5))
    for dp in range(4):
        for mt in range(4):
            a = acc(2*dp, mt)[1]; b = acc(2*dp+1, mt)[1]
            for r in (a, a+2, b, b+2): k("v_pk_mul_f32 v[%d:%d], v[%d:%d], s[60:61]" % (r, r+1, r, r+1))
            for t in pack(a, a, b): k(t)
            so = (58 if mt < 2 else 59) if dp < 2 else (68 if mt < 2 else 69)
            k("buffer_store_dwordx4 %s, v26, s[20:23], s%d offen offset:%d" % (vr(a), so, (dp & 1)*2048 + (mt & 1)*256))
    st()
    for t in range(2):
        for mt in range(4):
            a = acc(8+2*t, mt)[1]; b = acc(9+2*t, mt)[1]
            for x in pack(a, a, b): k(x)
    PB = 64
    for t in (1, 0):
        for mt in range(4):
            for ft in range(2):
                d = PB + ((t*4+mt)*2+ft)*4
                k("v_mfma_f32_16x16x32_bf16 %s, %s, %s, 0" % (vr(d), vr(WPHI+4*ft), vr(acc(8+2*t, mt)[1])))
    VCH = 128
    for p in range(2):
        for tau in range(2):
            a = acc(12+tau, 2*p)[1]
            for n in range(8): k("v_accvgpr_read_b32 v%d, a%d" % (144+n, a+n))
            for x in pack(VCH + (p*2+tau)*4, 144, 148): k(x)
    k("s_waitcnt vmcnt(16) lgkmcnt(0)")
    k("s_movk_i32 s62, 136\nv_mov_b32 v5, s46\nv_mad_u32_u24 v27, v%d, s62, v5\nv_lshl_add_u32 v27, v%d, 3, v27" % (VJ, VG))
    k("v_lshl_add_u32 v6, v%d, 2, v%d\nv_mad_u32_u24 v28, v6, s62, v5\nv_lshl_add_u32 v28, v%d, 3, v28" % (VG, VR_, VC))
    T0, T1 = 152, 172
    for mt in range(0, 4, 2):
        P0 = PB + (4+mt)*8; P1 = PB + (4+mt+1)*8
        for x in merge(softmax_pm(P0, T0, T0+12), softmax_pm(P1, T1, T1+12)): k(x)
        for m, T in ((mt, T0), (mt+1, T1)):
            for sg in range(2):
                for ft in range(2):
                    k("ds_write_b64 v27, v[%d:%d] offset:%d" % (T+12+4*sg+2*ft, T+12+4*sg+2*ft+1, m*16*136 + sg*64 + ft*32))
    k("s_waitcnt lgkmcnt(0)")
    AF = 192
    for p in range(2):
        for F in range(4):
            for hb in range(2):
                b = AF + (p*4+F)*4 + 2*hb
                k("ds_read_b64_tr_b16 v[%d:%d], v28 offset:%d" % (b, b+1, (32*p+16*hb)*136 + 32*F))
    k("s_lshl_b32 s68, s53, 18\ns_add_u32 s68, s68, 0x%x\ns_lshl_b32 s58, s55, 7\ns_add_u32 s58, s58, s68\ns_lshl_b32 s59, s57, 7\ns_add_u32 s59, s59, s68" % WS_PHIQ)
    k("v_lshlrev_b32 v29, 4, v2")
    k("v_mov_b32 v224, 0x3f803f80\nv_mov_b32 v225, v224\nv_mov_b32 v226, v224\nv_mov_b32 v227, v224")
    KVA = 96
    first_q = True
    for mt in range(0, 4, 2):
        P0 = PB + mt*8; P1 = PB + (mt+1)*8
        for x in merge(softmax_pm(P0, T0, T0+12), softmax_pm(P1, T1, T1+12)): k(x)
        for m, T in ((mt, T0), (mt+1, T1)):
            for sg in range(2):
                k("buffer_store_dwordx4 %s, v29, s[20:23], s%d offen offset:%d" % (vr(T+12+4*sg), 58 if m < 2 else 59, (m & 1)*2048 + sg*1024))
        if first_q:
            first_q = False
            k("s_waitcnt lgkmcnt(0)")
            for p in range(2):
                for F in range(4):
                    for c in range(3):
                        d = vr(64 + (F*3+c)*4, 4, "a")
                        B = vr(VCH + (p*2+c)*4) if c < 2 else vr(224)
                        k("v_mfma_f32_16x16x32_bf16 %s, %s, %s, %s" % (d, vr(AF + (p*4+F)*4), B, "0" if p == 0 else d))
    st()
    k("s_barrier")
    k("s_mul_i32 s62, s52, 12288\ns_add_u32 s62, s62, 0x10000\nv_add_u32 v30, s62, v29")
    for t in range(12): k("ds_write_b128 v30, %s offset:%d" % (vr(64+4*t, 4, "a"), t*1024))
    k("s_waitcnt lgkmcnt(0)\ns_barrier")
    k("s_mul_i32 s62, s52, 3072\ns_add_u32 s63, s62, 0x10000\nv_add_u32 v30, s63, v29")
    for t in range(3):
        for w in range(4): k("ds_read_b128 %s, v30 offset:%d" % (vr(64 + (t*4+w)*4), w*12288 + t*1024))
    k("s_lshl_b32 s58, s53, 3\ns_add_u32 s58, s58, s54\ns_mul_i32 s58, s58, 12288\ns_add_u32 s58, s58, s62\ns_add_u32 s58, s58, 0x%x" % WS_KVP)
    k("s_waitcnt lgkmcnt(0)")
    for t in range(3):
        b = 64 + t*16
        for w in range(1, 4):
            for r in (0, 2): k("v_pk_add_f32 v[%d:%d], v[%d:%d], v[%d:%d]" % (b+r, b+r+1, b+r, b+r+1, b+4*w+r, b+4*w+r+1))
        k("buffer_store_dwordx4 %s, v29, s[20:23], s58 offen offset:%d" % (vr(b), t*1024))
    st()
    if stamps: k("s_waitcnt vmcnt(0)")
    st()
    st.store(20, 52, 0)
    k("K1_end:")
    rep = finish(k)
    return k, rep

if __name__ == "__main__":
    import sys
    k, rep = gen_k1(stamps=len(sys.argv) > 1)
    print(len(k.lines), "lines;", len(rep), "nops inserted")
    for r in rep[:60]: print(r)
    emit_file("k1.s", [(k, 256, 256, 163840)])
```

```python
from common import *

OA, OB, QA, QB, KB, VB = 0, 64, 128, 160, 192, 224
KPOOL = [KB + 4*n for n in range(8)] + [QA + 4*n for n in range(8)]
VPOOL = [VB + 4*n for n in range(8)] + [OA + 4*n for n in range(8)]
def S(par, f): return 64 + par*32 + f*16
NEG = [128, 144, 160]
def P(f): return 176 + 8*f
E0 = 192
TS = [208, 209]; L = [210, 211]; THR = [212, 213]; G1 = [214, 215]
VI = [8, 9]; VLANE16 = 10; VDMA = 11; VST = 12
RT = 32
BAR = 22
BIG = 2.0**64

def softmax_list(par, f):
    s = S(par, f); e = E0 + 8*f; p = P(f); ts = TS[f]
    out = []
    def ex(j): out.append(("v_exp_f32 v%d, v%d" % (e + j % 8, s + j), 8))
    def fin(j):
        a, b = e + j % 8, e + (j+1) % 8
        if j == 0: out.append(("v_add_f32 v%d, v%d, v%d" % (ts, a, b), 4))
        else:
            out.append(("v_add_f32 v%d, v%d, v%d" % (ts, ts, a), 4))
        out.append(("v_cvt_pk_bf16_f32 v%d, v%d, v%d" % (p + j//2, a, b), 4))
        if j: out.append(("v_add_f32 v%d, v%d, v%d" % (ts, ts, b), 4))
    ex(0); ex(1); ex(2)
    for j in range(0, 16, 2):
        if j+3 < 16: ex(j+3)
        fin(j)
        if j+4 < 16: ex(j+4)
    return out
HALF = None
def split_point():
    l = softmax_list(0, 0); tot = sum(c for _, c in l); cum = 0
    for n, (_, c) in enumerate(l):
        if cum >= tot/2: return n
        cum += c
HALF = split_point()

def prep_list(neg, thr, t0=RT):
    out = []
    for r in range(16):
        kap = 8*(r >> 2) + (r & 3)
        t = t0 + (r % 4)
        out.append("v_add_f32 v%d, %s, v%d" % (t, f32(-kap*BIG), thr))
        out.append("v_min_f32 v%d, v%d, v%d" % (neg + r, neg + r, t))
    return out

def k_reads(kind, vi):
    if kind == "dual":
        return [("ds_read_b128 %s, v%d offset:%d" % (vr(KPOOL[n], 4, "a"), vi, n*1024), ("K", n)) for n in range(8)]
    return [("ds_read_b128 %s, v%d offset:%d" % (vr(KPOOL[n], 4, "a"), vi, (n & 1)*16384 + (n >> 1)*1024), ("K", n)) for n in range(16)]
NTAIL = {"dual": 8, "single": 10}

class Ctx:
    def __init__(self, k): self.k = k; self.rare = []; self.n = 0

def rowmax(k, s, d, t):
    k("v_max3_f32 v%d, v%d, v%d, v%d" % (d, s, s+1, s+2))
    for j in range(3, 15, 2): k("v_max3_f32 v%d, v%d, v%d, v%d" % (d, d, s+j, s+j+1))
    k("v_max_f32 v%d, v%d, v%d" % (d, d, s+15))
    k("v_mov_b32 v%d, v%d\nv_permlane32_swap_b32 v%d, v%d\nv_max_f32 v%d, v%d, v%d" % (t, d, d, t, d, d, t))

def emit_rare(k, lab, back, par, f, qk, pv, redo):
    k("%s:" % lab)
    k("s_nop 15\ns_nop 15")
    d, t = RT, RT+1
    rowmax(k, S(par, f), d, t)
    k("v_max_f32 v%d, 0, v%d" % (d, d))
    isB = (pv == "single") or f == 1
    adj = [S(par, f)]
    if pv == "single": adj.append(S(par, 1-f))
    if qk == "dual": adj.append(S(1-par, f))
    elif qk == "single" and isB: adj += [S(1-par, 0), S(1-par, 1)]
    if qk != "none": adj += [NEG[1], NEG[2]] if isB else [NEG[0]]
    for b in adj:
        for j in range(16): k("v_sub_f32 v%d, v%d, v%d" % (b+j, b+j, d))
    k("v_exp_f32 v%d, -v%d" % (t, d))
    o = OB if isB else OA; l = L[1 if isB else 0]
    k("s_nop 0\nv_mul_f32 v%d, v%d, v%d" % (l, l, t))
    for j in range(0, 64, 4):
        for n in range(4): k("v_accvgpr_read_b32 v%d, a%d" % (RT+4+n, o+j+n))
        for n in range(4): k("v_mul_f32 v%d, v%d, v%d" % (RT+4+n, RT+4+n, t))
        for n in range(4): k("v_accvgpr_write_b32 a%d, v%d" % (o+j+n, RT+4+n))
    for x in redo: k(x)
    k("s_nop 3\ns_branch %s" % back)

def step(cx, lg, par, qk, pv, nextqk, prepA=False, prepB=False, extra=None):
    k = cx.k
    mf = []; needs = []
    if qk == "dual":
        for ks in range(8):
            for f in range(2):
                d = vr(S(1-par, f), 16); c = vr(NEG[f], 16) if ks == 0 else d
                mf.append("v_mfma_f32_32x32x16_bf16 %s, %s, %s, %s" % (d, vr(KPOOL[ks], 4, "a"), vr((QA, QB)[f] + 4*ks, 4, "a"), c)); needs.append({("K", ks)})
    elif qk == "single":
        for ks in range(8):
            for f in range(2):
                d = vr(S(1-par, f), 16); c = vr(NEG[1+f], 16) if ks == 0 else d
                mf.append("v_mfma_f32_32x32x16_bf16 %s, %s, %s, %s" % (d, vr(KPOOL[2*ks+f], 4, "a"), vr(QB + 4*ks, 4, "a"), c)); needs.append({("K", 2*ks+f)})
    else:
        for n in range(16): mf.append(None); needs.append(set())
    for f in range(2):
        for u in range(2):
            for db in range(4):
                n = u*4 + db + (8*f if pv == "single" else 0)
                o = (OB if (pv == "single" or f == 1) else OA) + 16*db
                mf.append("v_mfma_f32_32x32x16_bf16 %s, %s, %s, %s" % (vr(o, 16, "a"), vr(VPOOL[n], 4, "a"), vr(P(f) + 4*u), vr(o, 16, "a"))); needs.append({("V", n)})
    fill = [[] for _ in range(32)]
    if qk != "none":
        rest = k_reads(qk, VI[1-par])[NTAIL[qk]:]
        for n, (t, tag) in enumerate(rest): fill[n].append(("lds", t, tag))
    nv = 8 if pv == "dual" else 16
    for n in range(nv):
        t = "ds_read_b128 %s, v%d offset:%d" % (vr(VPOOL[n], 4, "a"), VI[par], 8192 + (n >> 3)*16384 + (n & 7)*1024)
        g = (3 + (n*10)//8) if pv == "dual" else (3 + n)
        if qk == "none": g = n if n < 8 else 8 + (n-8)//2
        fill[g].append(("lds", t, ("V", n)))
    if nextqk != "end":
        nd = 4 if pv == "dual" else 8
        for n in range(nd):
            t = ""
            if n % 4 == 0: t = "s_mov_b32 m0, s41\ns_add_u32 s41, s41, 0x4000\ns_and_b32 s41, s41, 0x1ffff\n"
            t += "buffer_load_dwordx4 v%d, s[8:11], s40 offen offset:%d lds" % (VDMA, (n % 4)*1024)
            if n % 4 == 3: t += "\ns_add_u32 s40, s40, 0x4000"
            fill[1 + (n*(BAR-2))//nd].append(("raw", t, None))
    if nextqk in ("dual", "single"):
        fill[BAR-1].append(("raw", "v_add_u32 v%d, s42, v%d\ns_add_u32 s42, s42, 0x%x\ns_and_b32 s42, s42, 0x1ffff" % (VI[par], VLANE16, 0x4000 if nextqk == "dual" else 0x8000), None))
        for n, (t, tag) in enumerate(k_reads(nextqk, VI[par])[:NTAIL[nextqk]]): fill[BAR+n].append(("lds", t, ("n",)+tag))
    l0 = softmax_list(par, 0); l1 = softmax_list(par, 1); ln = softmax_list(1-par, 0)
    def spread(lst, g0, g1, name):
        tot = sum(c for _, c in lst); cum = 0
        for (t, c) in lst:
            fill[g0 + int((cum + c/2)*(g1-g0)/tot)].append(("valu", t, name)); cum += c
    spread(l0[HALF:], 0, 8, 0)
    fill[7].append(("check", 0, None))
    spread(l1, 8, 24, 1)
    fill[23].append(("check", 1, None))
    if qk != "none": spread(ln[:HALF], 24, 32, "n")
    if extra:
        for g, t in extra: fill[g].append(("raw", t, None))
    done = {0: [t for t, _ in l0[:HALF]], 1: []}
    for g in range(32):
        if g == BAR and nextqk != "end":
            k("s_waitcnt lgkmcnt(0) vmcnt(8)\ns_barrier"); lg.drain()
        w = lg.need(needs[g])
        if w: k(w)
        if mf[g]: k(mf[g])
        for kind, t, tag in sorted(fill[g], key=lambda x: {"lds": 0, "raw": 1, "valu": 2, "check": 3}[x[0]]):
            if kind == "check":
                f = t; cx.n += 1
                lab, back = "K2_rare%d" % cx.n, "K2_back%d" % cx.n
                k("v_cmp_nge_f32 vcc, s43, v%d\ns_cbranch_vccnz %s\n%s:" % (TS[f], lab, back))
                li = L[1] if (pv == "single" or f == 1) else L[0]
                k("v_add_f32 v%d, v%d, v%d" % (li, li, TS[f]))
                redo = list(done[f])
                if pv == "single" and f == 0: redo += done[1]
                cx.rare.append((lab, back, par, f, qk, pv, redo))
            else:
                k(t)
                if kind == "lds": lg.issue(tag)
                if kind == "valu" and tag in (0, 1): done[tag].append(t)
        if g == 4:
            for on, sthr, blocks in ((prepA, 45, [(NEG[0], THR[0], 32)]), (prepB, 46, [(NEG[1], THR[1], 32), (NEG[2], THR[1], 32)])):
                if not on: continue
                cx.n += 1; lab = "K2_np%d" % cx.n
                k("s_cmp_lt_i32 s44, s%d\ns_cbranch_scc1 %s" % (sthr, lab))
                for neg, thr, dec in blocks:
                    for x in prep_list(neg, thr): k(x)
                    k("v_add_f32 v%d, %s, v%d" % (thr, f32(-dec*BIG), thr))
                k("%s:" % lab)
    k("s_add_u32 s44, s44, 1")
    lg.q = [t[1:] if t[0] == "n" else t for t in lg.q]

def frag_epilogue(k, o, l, g1, soff):
    t, r = RT, RT+1
    k("v_mov_b32 v%d, v%d\nv_permlane32_swap_b32 v%d, v%d\nv_add_f32 v%d, v%d, v%d\nv_rcp_f32 v%d, v%d\nv_mul_f32 v%d, v%d, v%d\nv_mov_b32 v%d, v%d" % (t, l, l, t, t, t, l, t, t, t, t, g1, r, t))
    for db in range(4):
        b = RT + 4 + 8*(0)
        for c in range(2):
            b = RT + 8 + 8*((db*2+c) % 3)
            for n in range(8): k("v_accvgpr_read_b32 v%d, a%d" % (b+n, o + 16*db + 8*c + n))
            for n in range(0, 8, 2): k("v_pk_mul_f32 v[%d:%d], v[%d:%d], v[%d:%d]" % (b+n, b+n+1, b+n, b+n+1, t, r))
            for n in range(4): k("v_cvt_pk_bf16_f32 v%d, v%d, v%d" % (b+n, b+2*n, b+2*n+1))
            k("buffer_store_dwordx4 %s, v%d, s[20:23], s%d offen offset:%d" % (vr(b), VST, soff, c*512))
        if db < 3: k("s_add_u32 s%d, s%d, 8192" % (soff, soff))

def gen_k2(name="k2_kernel", prefetch=True, stamps=False):
    k = K(name, vgpr=512, accum=256, sgpr=96)
    cx = Ctx(k)
    k("s_cmp_ge_u32 s2, 256\ns_cbranch_scc1 K2_end")
    st = Stamps(k, stamps, 20); st()
    k("s_load_dwordx2 s[4:5], s[0:1], 104")
    k("v_lshrrev_b32 v1, 6, v0\nv_and_b32 v2, 63, v0")
    k("v_readfirstlane_b32 s52, v1")
    k("s_and_b32 s53, s2, 31\ns_lshr_b32 s54, s2, 5\ns_sub_u32 s55, 15, s54")
    k("v_lshlrev_b32 v%d, 4, v2\ns_lshl_b32 s41, s52, 12\nv_add_u32 v%d, s41, v%d" % (VLANE16, VDMA, VLANE16))
    k("s_lshl_b32 s56, s54, 2\ns_add_u32 s56, s56, s52\ns_lshl_b32 s57, s55, 2\ns_add_u32 s57, s57, s52")
    k("s_lshl_b32 s40, s53, 20")
    k("s_add_u32 s58, s55, 1\ns_lshl_b32 s58, s58, 16\ns_add_u32 s58, s58, s40")
    k("s_lshl_b32 s59, s53, 6\ns_add_u32 s60, s59, s56\ns_add_u32 s61, s59, s57\ns_lshl_b32 s60, s60, 13\ns_lshl_b32 s61, s61, 13")
    k("s_add_u32 s60, s60, 0x%x\ns_add_u32 s61, s61, 0x%x\ns_add_u32 s62, s60, 4096\ns_add_u32 s63, s61, 4096" % (WS_Q, WS_Q))
    k("v_and_b32 v3, 31, v2\nv_lshrrev_b32 v4, 5, v2\nv_lshlrev_b32 v5, 2, v3")
    k("s_lshl_b32 s64, s56, 7\ns_lshl_b32 s65, s57, 7\ns_add_u32 s64, s64, 0x%x\ns_add_u32 s65, s65, 0x%x" % (WS_G, WS_G))
    k("s_waitcnt lgkmcnt(0)")
    srd(k, 20, 4, WS_BYTES)
    k("s_mov_b32 s8, s4\ns_and_b32 s9, s5, 0xffff\ns_mov_b32 s10, s58\ns_mov_b32 s11, 0x20000")
    k("buffer_load_dword v%d, v5, s[20:23], s64 offen\nbuffer_load_dword v%d, v5, s[20:23], s65 offen" % (G1[0], G1[1]))
    for n in range(16):
        k("buffer_load_dwordx4 %s, v%d, s[20:23], s%d offen offset:%d" % (vr(QA + 4*n, 4, "a"), VLANE16, 60 + (n >> 3) + 2*((n >> 2) & 1), (n & 3)*1024))
    for u in range(6):
        k("s_mov_b32 m0, s41\ns_add_u32 s41, s41, 0x4000")
        for n in range(4): k("buffer_load_dwordx4 v%d, s[8:11], s40 offen offset:%d lds" % (VDMA, n*1024))
        k("s_add_u32 s40, s40, 0x4000")
    npf = code_prefetch(k, 16384, 22, None) if prefetch else 0
    for r in range(128): k("v_accvgpr_write_b32 a%d, 0" % r)
    k("v_mov_b32 v%d, 0\nv_mov_b32 v%d, 0" % (L[0], L[1]))
    k("s_lshl_b32 s66, s52, 5\nv_add_u32 v6, s66, v3\nv_lshlrev_b32 v7, 2, v4\nv_sub_u32 v6, v6, v7\nv_cvt_f32_i32 v6, v6\nv_add_f32 v6, 0.5, v6")
    k("v_mul_f32 v%d, %s, v6\nv_mov_b32 v%d, v%d" % (THR[0], f32(BIG), THR[1], THR[0]))
    k("v_and_b32 v6, 15, v3\nv_lshlrev_b32 v6, 4, v6\nv_lshl_add_u32 v6, v4, 8, v6\nv_lshrrev_b32 v7, 4, v3\nv_lshl_add_u32 v6, v7, 10, v6\ns_lshl_b32 s66, s52, 11\nv_add_u32 v%d, s66, v6" % VST)
    k("s_mul_i32 s67, s54, %d\ns_mul_i32 s68, s55, %d\ns_lshl_b32 s66, s53, 15\ns_add_u32 s66, s66, 0x%x" % (160*8192, 160*8192, WS_CTX + 32*8192))
    k("s_add_u32 s69, s67, s66\ns_add_u32 s70, s68, s66")
    k("s_mov_b32 s43, %s\ns_mov_b32 s44, 0\ns_lshl_b32 s47, s54, 2\ns_sub_u32 s45, s47, 2\ns_mov_b32 s46, 30" % f32(65536.0))
    k("v_mov_b32 v%d, v%d\nv_add_u32 v%d, 0x4000, v%d\ns_mov_b32 s42, 0x8000" % (VI[0], VLANE16, VI[1], VLANE16))
    k("s_waitcnt vmcnt(%d)\ns_barrier" % (16 + npf))
    st()
    lg = Lgkm()
    for t, tag in k_reads("dual", VI[0]): k(t); lg.issue(tag)
    k("v_sub_f32 v%d, 1.0, v%d\nv_sub_f32 v%d, 1.0, v%d" % (G1[0], G1[0], G1[1], G1[1]))
    for ks in range(8):
        w = lg.need({("K", ks)})
        if w: k(w)
        for f in range(2):
            d = vr(S(0, f), 16)
            k("v_mfma_f32_32x32x16_bf16 %s, %s, %s, %s" % (d, vr(KPOOL[ks], 4, "a"), vr((QA, QB)[f] + 4*ks, 4, "a"), "0" if ks == 0 else d))
    for t, tag in k_reads("dual", VI[1]): k(t); lg.issue(tag)
    k("s_nop 3\ns_cmp_lg_u32 s54, 0\ns_cbranch_scc1 K2_nomask0")
    for x in prep_list(S(0, 0), THR[0]): k(x)
    k("v_add_f32 v%d, %s, v%d" % (THR[0], f32(-32*BIG), THR[0]))
    k("K2_nomask0:")
    for f in range(2):
        d = RT + 8 + f
        rowmax(k, S(0, f), d, RT + 10 + f)
        for j in range(16): k("v_sub_f32 v%d, v%d, v%d" % (S(0, f)+j, S(0, f)+j, d))
        for nb in ([NEG[0]] if f == 0 else [NEG[1], NEG[2]]):
            for j in range(16): k("v_sub_f32 v%d, 0, v%d" % (nb+j, d))
    k("s_cmp_lg_u32 s54, 0\ns_cbranch_scc1 K2_nomask1")
    for x in prep_list(NEG[0], THR[0]): k(x)
    k("v_add_f32 v%d, %s, v%d" % (THR[0], f32(-32*BIG), THR[0]))
    k("K2_nomask1:")
    for t, c in softmax_list(0, 0)[:HALF]: k(t)
    st()
    stD = list(lg.q)
    k("s_lshl_b32 s47, s54, 1\ns_add_u32 s47, s47, 1")
    k("K2_loopD:")
    step(cx, lg, 0, "dual", "dual", "dual", prepA=True)
    step(cx, lg, 1, "dual", "dual", "dual", prepA=True)
    assert lg.q == stD, (lg.q, stD)
    k("s_sub_u32 s47, s47, 1\ns_cmp_lg_u32 s47, 0\ns_cbranch_scc1 K2_loopD")
    step(cx, lg, 0, "dual", "dual", "single", prepB=True)
    step(cx, lg, 1, "single", "dual", "single", prepB=True)
    stS = list(lg.q)
    st()
    frag_epilogue(k, OA, L[0], G1[0], 69)
    st()
    k("s_lshl_b32 s47, s54, 1\ns_sub_u32 s47, 14, s47\ns_cmp_eq_u32 s47, 0\ns_cbranch_scc1 K2_tail")
    k("K2_loopS:")
    step(cx, lg, 0, "single", "single", "single", prepB=True)
    step(cx, lg, 1, "single", "single", "single", prepB=True)
    assert lg.q == stS
    k("s_sub_u32 s47, s47, 1\ns_cmp_lg_u32 s47, 0\ns_cbranch_scc1 K2_loopS")
    k("K2_tail:")
    step(cx, lg, 0, "single", "single", "end")
    KR = list(range(S(0, 0), S(0, 0)+32, 4)) + list(range(128, 176, 4)) + list(range(216, 256, 4)) + [24, 28]
    assert len(KR) == 32
    k("s_mul_i32 s71, s53, %d\ns_lshl_b32 s72, s52, 10\ns_add_u32 s71, s71, s72\ns_add_u32 s71, s71, 0x%x" % (8*12288, WS_KVP))
    k("s_cmp_eq_u32 s52, 3\ns_cselect_b32 s71, 0x%x, s71" % BIGOFF)
    k("v_add_u32 v13, 6144, v%d" % VLANE16)
    ex = []
    for p in range(8):
        for F in range(4):
            t = "buffer_load_dwordx4 %s, v%d, s[20:23], s71 offen offset:%d" % (vr(KR[p*4+F]), VLANE16 if F < 2 else 13, (F & 1)*3072)
            if F == 3: t += "\ns_add_u32 s71, s71, 12288"
            ex.append(t)
    k("s_lshl_b32 s72, s53, 18\ns_add_u32 s72, s72, 0x%x\ns_lshl_b32 s73, s56, 12\ns_lshl_b32 s74, s57, 12\ns_add_u32 s73, s73, s72\ns_add_u32 s74, s74, s72" % WS_PHIQ)
    for mt in range(4):
        for sg in range(2):
            ex.append("buffer_load_dwordx4 %s, v%d, s[20:23], s%d offen offset:%d" % (vr(KB + (mt*2+sg)*4, 4, "a"), VLANE16, 73 + (mt >> 1), (mt & 1)*2048 + sg*1024))
    k("v_and_b32 v14, 15, v2\nv_lshlrev_b32 v14, 2, v14")
    for mt in range(4):
        ex.append("buffer_load_dword v%d, v14, s[20:23], s%d offen offset:%d" % (16+mt, 64 + (mt >> 1), (mt & 1)*64))
    step(cx, lg, 1, "none", "single", "end", extra=[((n*28)//len(ex), t) for n, t in enumerate(ex)])
    st()
    frag_epilogue(k, OB, L[1], G1[1], 70)
    st()
    k("s_waitcnt vmcnt(8)")
    for p in range(1, 8):
        for F in range(4):
            for r in (0, 2): k("v_pk_add_f32 v[%d:%d], v[%d:%d], v[%d:%d]" % (KR[F]+r, KR[F]+r+1, KR[F]+r, KR[F]+r+1, KR[p*4+F]+r, KR[p*4+F]+r+1))
    for sg in range(2):
        a, b = KR[2*sg], KR[2*sg+1]
        k("v_cvt_pk_bf16_f32 v%d, v%d, v%d\nv_cvt_pk_bf16_f32 v%d, v%d, v%d\nv_cvt_pk_bf16_f32 v%d, v%d, v%d\nv_cvt_pk_bf16_f32 v%d, v%d, v%d" % (a, a, a+1, a+1, a+2, a+3, a+2, b, b+1, a+3, b+2, b+3))
    k("s_lshl_b32 s72, s52, 11\ns_add_u32 s72, s72, 0x20000\nv_add_u32 v13, s72, v%d" % VLANE16)
    k("ds_write_b128 v13, %s\nds_write_b128 v13, %s offset:1024" % (vr(KR[0]), vr(KR[2])))
    k("v_add_u32 v13, 0x20000, v%d" % VLANE16)
    k("s_waitcnt lgkmcnt(0)\ns_barrier")
    AFR = 128
    for n in range(6): k("ds_read_b128 %s, v13 offset:%d" % (vr(AFR + 4*n), n*1024))
    k("s_lshl_b32 s72, s53, 13\ns_lshl_b32 s73, s52, 11\ns_add_u32 s72, s72, s73\ns_add_u32 s72, s72, 0x%x\ns_add_u32 s73, s72, s67\ns_add_u32 s74, s72, s68" % WS_CTX)
    k("s_waitcnt lgkmcnt(0)")
    DB = 64
    for mt in range(4):
        for c in (2, 0, 1):
            d = vr(DB + (mt*3+c)*4)
            for sg in range(2):
                k("v_mfma_f32_16x16x32_bf16 %s, %s, %s, %s" % (d, vr(AFR + (c*2+sg)*4), vr(KB + (mt*2+sg)*4, 4, "a"), "0" if sg == 0 else d))
    for mt in range(4):
        b = DB + mt*12
        k("v_add_f32 v%d, %s, v%d\nv_rcp_f32 v%d, v%d\nv_mul_f32 v%d, v%d, v%d\nv_mov_b32 v%d, v%d" % (b+8, f32(1e-6), b+8, b+8, b+8, b+8, b+8, 16+mt, b+9, b+8))
        for n in range(0, 8, 2): k("v_pk_mul_f32 v[%d:%d], v[%d:%d], v[%d:%d]" % (b+n, b+n+1, b+n, b+n+1, b+8, b+9))
        for n in range(4): k("v_cvt_pk_bf16_f32 v%d, v%d, v%d" % (b+n, b+2*n, b+2*n+1))
        k("buffer_store_dwordx4 %s, v%d, s[20:23], s%d offen offset:%d" % (vr(b), VLANE16, 73 + (mt >> 1), (mt & 1)*1024))
    st()
    if stamps: k("s_waitcnt vmcnt(0)")
    st()
    st.store(20, 52, 1)
    k("K2_end:\ns_endpgm")
    for r in cx.rare: emit_rare(k, *r)
    rep = finish(k)
    return k, rep

if __name__ == "__main__":
    import sys, k1
    stamps = len(sys.argv) > 1
    a, rep = k1.gen_k1(stamps=stamps)
    b, rep = gen_k2(stamps=stamps)
    print(len(b.lines), "lines;", len(rep), "nops inserted")
    for r in rep[:80]: print(r)
    emit_file("k12.s", [(a, 256, 256, 163840), (b, 256, 256, 131072 + 8192)])
```

```python
from common import *
NR = 5; LA = 4
AR = 64
WFR = 128
VL, VL2, WDV, WRA = 8, 9, 10, 14
def acc(rt, nt): return (rt*4+nt)*4

def vmem_ops(slot):
    ops = []
    for p in range(4):
        t = ("s_add_u32 m0, s46, %d\ns_nop 0\n" % (slot*4096)) if p == 0 else ""
        t += "buffer_load_dwordx4 v%d, s[12:15], s34 offen offset:%d lds" % (WDV+p, p*1024)
        if p == 3: t += "\ns_add_u32 s34, s34, 0x10000"
        ops.append(t)
    for rt in range(8):
        t = "buffer_load_dwordx4 %s, v%d, s[20:23], s33 offen offset:%d" % (vr(AR + slot*32 + rt*4), VL if rt < 4 else VL2, (rt & 3)*1024)
        if rt == 7: t += "\ns_add_u32 s33, s33, 8192"
        ops.append(t)
    return ops
def w_reads(slot, par):
    out = []
    for nt in range(4):
        for hb in range(2):
            b = WFR + par*16 + nt*4 + 2*hb
            out.append(("ds_read_b64_tr_b16 a[%d:%d], v%d offset:%d" % (b, b+1, WRA + (nt >> 1), slot*4096 + hb*1024 + 8*(nt & 1)), ("W", nt)))
    return out

def gen_k3(name="k3_kernel", prefetch=True, stamps=False):
    k = K(name, vgpr=512, accum=256, sgpr=96)
    k("s_cmp_ge_u32 s2, 256\ns_cbranch_scc1 K3_end")
    st = Stamps(k, stamps, 20); st()
    k("s_load_dwordx2 s[4:5], s[0:1], 104\ns_load_dwordx2 s[6:7], s[0:1], 24\ns_load_dwordx2 s[24:25], s[0:1], 72\ns_load_dwordx2 s[26:27], s[0:1], 88")
    k("v_lshrrev_b32 v1, 6, v0\nv_and_b32 v2, 63, v0")
    k("v_readfirstlane_b32 s52, v1")
    k("s_bfe_u32 s53, s2, 0x20001\ns_lshl_b32 s53, s53, 2\ns_bfe_u32 s55, s2, 0x20003\ns_add_u32 s53, s53, s55")
    k("s_and_b32 s54, s2, 1\ns_lshl_b32 s54, s54, 3\ns_lshr_b32 s55, s2, 5\ns_add_u32 s54, s54, s55")
    k("v_lshlrev_b32 v%d, 4, v2\nv_add_u32 v%d, 4096, v%d" % (VL, VL2, VL))
    k("v_lshrrev_b32 v3, 3, v2\nv_and_b32 v4, 7, v2\nv_bfe_u32 v5, v3, 1, 1\nv_lshlrev_b32 v5, 2, v5\nv_xor_b32 v4, v4, v5\nv_lshlrev_b32 v4, 4, v4\nv_lshl_add_u32 v4, v3, 11, v4")
    k("s_lshl_b32 s55, s54, 7\nv_add_u32 v%d, s55, v4" % WDV)
    for p in range(1, 4): k("v_add_u32 v%d, %d, v%d" % (WDV+p, p*15360, WDV))
    k("s_mul_i32 s56, s53, %d\ns_add_u32 s56, s56, 0x%x\ns_lshl_b32 s57, s52, 16\ns_add_u32 s33, s56, s57" % (160*8192, WS_CTX))
    k("s_lshl_b32 s57, s52, 18\ns_add_u32 s35, s56, s57\ns_add_u32 s35, s35, %d" % (32*8192))
    k("s_lshl_b32 s34, s52, 19\ns_lshl_b32 s36, s52, 21\ns_lshl_b32 s46, s52, 15")
    k("s_waitcnt lgkmcnt(0)")
    srd(k, 20, 4, WS_BYTES); srd(k, 12, 6, 1024*1024*2); srd(k, 28, 26, 2048*1024*2)
    for b in range(LA):
        for t in vmem_ops(b): k(t)
    npf = code_prefetch(k, 8192, 22, None) if prefetch else 0
    k("v_lshrrev_b32 v3, 5, v2\nv_lshlrev_b32 v3, 11, v3\nv_bfe_u32 v4, v2, 2, 3\nv_lshl_add_u32 v3, v4, 7, v3\nv_add_u32 v3, s46, v3")
    k("v_bfe_u32 v4, v2, 3, 1\nv_lshlrev_b32 v4, 2, v4\nv_and_b32 v5, 3, v2\nv_or_b32 v4, v4, v5\nv_lshl_add_u32 v%d, v4, 4, v3\nv_xor_b32 v4, 4, v4\nv_lshl_add_u32 v%d, v4, 4, v3" % (WRA, WRA+1))
    for r in range(128): k("v_accvgpr_write_b32 a%d, 0" % r)
    k("s_waitcnt vmcnt(%d)" % (44 + npf))
    lg = Lgkm()
    for t, tag in w_reads(0, 0): k(t); lg.issue(tag)
    k("s_waitcnt vmcnt(32)" if npf else "")
    st0 = list(lg.q)
    k("s_mov_b32 s45, 0")
    st()
    k("K3_loop:")
    for it2 in range(2):
        for slot in range(NR):
            par = (it2*NR + slot) & 1
            if it2 == 0 and slot == 4:
                k("s_cmp_lg_u32 s45, 0\ns_cbranch_scc1 K3_nosw")
                k("s_mov_b32 s12, s24\ns_and_b32 s13, s25, 0xffff\ns_mov_b32 s14, 0x800000\ns_mov_b32 s33, s35\ns_mov_b32 s34, s36")
                k("K3_nosw:")
            if it2 == 1 and slot == 1:
                k("s_cmp_eq_u32 s45, 3\ns_cselect_b32 s33, 0x%x, s33\ns_cselect_b32 s34, 0x%x, s34" % (BIGOFF, BIGOFF))
            k("s_waitcnt vmcnt(32)")
            fill = [[] for _ in range(32)]
            for n, t in enumerate(vmem_ops((slot+LA) % NR)): fill[(n*31)//12].append(("raw", t, None))
            for n, (t, tag) in enumerate(w_reads((slot+1) % NR, 1-par)): fill[1 + 2*n + n//2].append(("lds", t, ("n",)+tag))
            for g in range(32):
                nt, rt = divmod(g, 8)
                w = lg.need({("W", nt)})
                if w: k(w)
                a = vr(acc(rt, nt), 4, "a")
                k("v_mfma_f32_16x16x32_bf16 %s, %s, %s, %s" % (a, vr(WFR + par*16 + nt*4, 4, "a"), vr(AR + slot*32 + rt*4), a))
                for kind, t, tag in fill[g]:
                    k(t)
                    if kind == "lds": lg.issue(tag)
            lg.q = [t[1:] if t[0] == "n" else t for t in lg.q]
    assert lg.q == st0
    k("s_add_u32 s45, s45, 1\ns_cmp_lt_u32 s45, 4\ns_cbranch_scc1 K3_loop")
    st()
    k("s_waitcnt vmcnt(0) lgkmcnt(0)")
    k("v_add_u32 v3, s46, v%d" % VL)
    for t in range(32): k("ds_write_b128 v3, %s offset:%d" % (vr(4*t, 4, "a"), t*1024))
    k("s_lshl_b32 s55, s52, 13\nv_add_u32 v3, s55, v%d\nv_add_u32 v4, 0x10000, v3" % VL)
    k("s_waitcnt lgkmcnt(0)\ns_barrier")
    for w in range(4):
        for t in range(8): k("ds_read_b128 %s, v%d offset:%d" % (vr(64 + (w*8+t)*4), 3 + (w >> 1), (w & 1)*32768 + t*1024))
    k("s_lshl_b32 s55, s53, 18\ns_lshl_b32 s56, s52, 16\ns_add_u32 s55, s55, s56\ns_lshl_b32 s56, s54, 7\ns_add_u32 s55, s55, s56\ns_add_u32 s56, s55, 0x8000")
    k("v_and_b32 v5, 15, v2\nv_lshlrev_b32 v5, 11, v5\nv_lshrrev_b32 v6, 4, v2\nv_lshl_add_u32 v5, v6, 4, v5")
    for w in range(1, 4):
        k("s_waitcnt lgkmcnt(%d)" % min(15, 8*(3-w)))
        for r in range(0, 32, 2): k("v_pk_add_f32 v[%d:%d], v[%d:%d], v[%d:%d]" % (64+r, 65+r, 64+r, 65+r, 64+32*w+r, 65+32*w+r))
    for q in range(4):
        b = 64 + 8*q
        for n in range(4): k("v_cvt_pk_bf16_f32 v%d, v%d, v%d" % (b+n, b+2*n, b+2*n+1))
        k("buffer_store_dwordx4 %s, v5, s[28:31], s%d offen offset:%d" % (vr(b), 55 + (q >> 1), (q & 1)*64))
    st()
    if stamps: k("s_waitcnt vmcnt(0)")
    st()
    st.store(20, 52, 2)
    k("K3_end:")
    rep = finish(k)
    return k, rep
```

```python
import sys
from common import *
import k1, k2, k3
HDR = open("gated_mix__linear_kernel_hedgehog__compressed_kv_cla__prompt.s.ref").read().split("; Override launch geometry")[0]
def build(path, stamps=False, **kw):
    a, r1 = k1.gen_k1(stamps=stamps)
    b, r2 = k2.gen_k2(stamps=stamps)
    c, r3 = k3.gen_k3(stamps=stamps)
    emit_file(path, [(a, 256, 256, 163840), (b, 256, 256, 131072 + 8192), (c, 256, 256, 131072)], header=HDR)
    return r1, r2, r3
if __name__ == "__main__":
    r = build("full.s"); build("full_st.s", stamps=True)
    for x in r[2]: print(x)
```

```python
from asmlib import *
import hazard, struct
def f32(x): return "0x%08x" % struct.unpack("<I", struct.pack("<f", x))[0]
LOG2E = 1.4426950408889634
WS_KV   = 0x0000000
WS_Q    = 0x2000000
WS_PHIQ = 0x3000000
WS_KVP  = 0x3800000
WS_G    = 0x3B00000
WS_FLAG = 0x3B10000
WS_CTX  = 0x4000000
WS_XCH  = 0x6000000
WS_BYTES = 0x10000000
BIGOFF = 0x40000000

class Lgkm:
    def __init__(self, init=()): self.q = list(init)
    def issue(self, tag): self.q.append(tag)
    def need(self, tags):
        idx = [n for n, t in enumerate(self.q) if t in tags]
        if not idx: return None
        last = max(idx)
        rem = len(self.q) - 1 - last
        self.q = self.q[last+1:]
        return "s_waitcnt lgkmcnt(%d)" % min(rem, 15) if rem <= 15 else self._clamp(rem)
    def _clamp(self, rem):
        self.q = self.q[-15:]
        return "s_waitcnt lgkmcnt(15)"
    def drain(self): self.q = []

def vr(b, n=4, f="v"): return "%s[%d:%d]" % (f, b, b+n-1)

def finish(k):
    rep = []
    k.lines = hazard.fix(k.lines, report=rep)
    pr = hazard.check_edges(k.lines)
    for p in pr: print("EDGE HAZARD", k.name, p)
    return rep

def code_prefetch(k, nbytes, vtmp, lab):
    n = (nbytes//128 + 31)//32
    k("s_getpc_b64 s[90:91]\nv_min_u32 v%d, %d, v0\nv_lshlrev_b32 v%d, 7, v%d\ns_lshr_b32 s88, s2, 3\ns_mul_i32 s88, s88, %d\nv_add_u32 v%d, s88, v%d" % (vtmp, n-1, vtmp, vtmp, n*128, vtmp, vtmp))
    k("global_load_dword v%d, v%d, s[90:91]" % (vtmp+1, vtmp))
    return 1

STAMP_OFF = 0x8000000
class Stamps:
    def __init__(self, k, on, v=62): self.k = k; self.on = on; self.n = 0; self.v = v
    def __call__(self):
        if not self.on or self.n >= 32: return
        k = self.k
        k("s_memtime s[92:93]\ns_memrealtime s[94:95]\ns_waitcnt lgkmcnt(0)\nv_writelane_b32 v%d, s92, %d\nv_writelane_b32 v%d, s94, %d" % (self.v+1, 2*self.n, self.v+1, 2*self.n+1))
        self.n += 1
    def store(self, srdb, swave, kidx=0):
        if not self.on: return
        k = self.k
        k("s_lshl_b32 s92, s2, 2\ns_add_u32 s92, s92, s%d\ns_lshl_b32 s92, s92, 8\ns_add_u32 s92, s92, 0x%x" % (swave, STAMP_OFF + kidx*0x40000))
        v = self.v
        k("v_and_b32 v%d, 63, v0\nv_lshlrev_b32 v%d, 2, v%d\nbuffer_store_dword v%d, v%d, s[%d:%d], s92 offen" % (v, v, v, v+1, v, srdb, srdb+3))
```

```python
from common import *
from k1 import alloc, micro, merge
import k2, k3f

XD, WD, XD2, WD2, XA, WA, WB, WA2, WB2 = 8, 16, 24, 32, 40, 42, 46, 48, 52
VPF1, VPF2, VK, VV, VFLAG, VPOLL = 54, 55, 56, 57, 58, 59
XF, WF = 64, 96
WPHI = 224
NWB = 8
def acc1(nt, mt): return ("v", 64 + (nt*4+mt)*4) if nt < 12 else ("a", ((nt-12)*4+mt)*4)
P2V = {8: 80, 9: 112, 10: 144, 11: 176}
def acc2(nt, mt):
    if nt in P2V: return ("v", P2V[nt] + 4*mt)
    n = nt if nt < 8 else nt - 4
    return ("a", n*16 + 4*mt) if n < 4 else ("a", 128 + (n-4)*16 + 4*mt)
def rs(t): return vr(t[1], 4, t[0])

def w_read(part, q, hb, slot):
    NT = 16 if part == 1 else 14
    ks, nt = divmod(q, NT)
    so = 32768 if slot == 1 else 0
    if part == 1 or nt < 8:
        return (WA2 if slot == 2 else WA) + (nt & 3), so + (nt >> 2)*8192 + ks*4096 + hb*512
    cg, seg = divmod(nt-8, 2)
    return (WB2 if slot == 2 else WB) + seg, so + ks*8192 + cg*1024 + hb*256

NT_W = ['']
NT_X = ['']
def dma_ops(j):
    part = 1 if j < 8 else 2; kk = j if j < 8 else j - 8
    slot = 0x10000 + (j % 3)*0x8000
    srdA, srdB, srdX = (12, 12, 8) if part == 1 else (16, 24, 28)
    xd, wd = (XD, WD) if part == 1 else (XD2, WD2)
    offA, offB = (41, 42) if part == 1 else (43, 44)
    W = []
    nb = 4 if part == 1 else 3
    for n in range(4 + nb):
        t = ""
        if n == 0: t += "s_add_u32 m0, s%d, 0x%x\ns_mov_b32 s34, 0x%x\n" % (offA, slot, kk*0x80000)
        if n == 4:
            t += "s_add_u32 m0, s%d, 0x%x\n" % (offB, slot)
            t += "s_nop 0\n" if part == 1 else "s_mov_b32 s35, 0x%x\n" % (kk*0x60000)
        s = srdA if n < 4 else srdB
        t += "buffer_load_dwordx4 v%d, s[%d:%d], s%d offen offset:%d %slds" % (wd+n, s, s+3, 34 if (n < 4 or part == 1) else 35, (n % 4)*1024, NT_W[0])
        W.append(t)
    X = []
    for n in range(8):
        t = ""
        if n % 4 == 0: t += "s_add_u32 m0, s46, %d\n" % ((j & 1)*8192 + n*1024) + ("s_movk_i32 s33, %d\n" % (kk*128) if n == 0 else "s_nop 0\n")
        t += "buffer_load_dwordx4 v%d, s[%d:%d], s33 offen offset:%d %slds" % (xd+n, srdX, srdX+3, (n % 4)*1024, NT_X[0])
        X.append(t)
    return W, X
def nvm(texts): return sum(l.startswith(("buffer", "global")) for t in texts for l in t.split("\n"))

def pstep(k, lg, j, fbase, head=(), after_bar=None, vm_extra=0, valu=(), spread=(), hgap=4):
    part = 1 if j < 8 else 2; last = j == 23
    npart = 1 if j+1 < 8 else 2
    NT = 16 if part == 1 else 14
    NF = 2*NT; NG = 4*NF; D = 6; par = j & 1
    accf = acc1 if part == 1 else acc2
    first = j in (0, 8)
    def wrd(p, q, slot, fb, tagpre, e, dl):
        out = []
        buf = WF + 4*((fb+q) % NWB)
        for hb in range(2):
            a, imm = w_read(p, q, hb, slot)
            out.append(("lds", "ds_read_b64_tr_b16 a[%d:%d], v%d offset:%d" % (buf+2*hb, buf+2*hb+1, a, imm), (tagpre, "W", q), e + 2*hb, dl))
        return out
    def xrd(ks, mt, slot, tagpre, e, dl):
        b = XF + 16*ks + 4*mt
        return ("lds", "ds_read_b128 a[%d:%d], v%d offset:%d" % (b, b+3, XA+ks, slot*8192 + mt*2048), (tagpre, "X", ks, mt), e, dl)
    bar = 4*(NF-4)
    sW = []
    for q in range(NF - D): sW += wrd(part, q+D, j % 3, fbase, "c", 4*q, 4*q+5)
    sX = [xrd(1, mt, par, "c", 4*(2+mt)+1, 4*NT-12) for mt in range(4)]
    sD = []; nv = 0
    h1 = 1 + hgap*len(head)
    if head: sD += micro(list(head), 1, h1, bar-1); nv += nvm(head)
    if j + 2 < 24:
        wd, xd = dma_ops(j+2)
        sD += micro(wd, max(3, h1), max(4*NT-2, h1+2*len(wd)), bar-1) + micro(xd, max(4*NT+3, h1+2*len(wd)), bar-4, bar-1); nv += nvm(wd) + nvm(xd)
    reserve = {g: 1 for g in range(7, NG, 8)}
    if not last:
        nxt = wrd(npart, 0, (j+1) % 3, fbase+NF, "n", bar, NG-1) + [xrd(0, mt, 1-par, "n", bar, NG-1) for mt in range(4)]
        for q in range(1, D): nxt += wrd(npart, q, (j+1) % 3, fbase+NF, "n", bar + (0 if q < 4 else 4*(q-3)), NG-1)
        nxt = [(x[0], x[1], x[2], max(bar, x[3] - (2 if x[3] > bar and x[3] % 4 == 2 else 0)), x[4]) for x in nxt]
        sW += nxt
        reserve[bar-1] = 2
    sV = micro(list(valu), 2, NG-2, NG-1) if valu else []
    sS = micro(list(spread), 5, bar-3, bar-1) if spread else []
    nv += nvm(valu) + nvm(spread)
    fill = alloc(NG, [sW, sX, sD, sS, sV], reserve)
    for g in range(NG):
        q, mt = divmod(g, 4); ks, nt = divmod(q, NT)
        if g == bar and not last:
            k("s_waitcnt lgkmcnt(0) vmcnt(%d)\ns_barrier" % (nv + vm_extra)); lg.drain()
            if after_bar: after_bar()
        if g % 8 == 0:
            nd = {("c", "W", q), ("c", "W", q+1)}
            for qq in (q, q+1):
                if qq % NT == 0: nd |= {("c", "X", qq // NT, m) for m in range(4)}
            w = lg.need(nd)
            if w: k(w)
        assert lg.need({("c", "W", q), ("c", "X", ks, mt)}) is None
        wf = vr(WF + 4*((fbase+q) % NWB), 4, "a"); xf = vr(XF + 16*ks + 4*mt, 4, "a")
        vtype = (part == 1 and nt >= 8) or (part == 2 and nt >= 12)
        A, B = (xf, wf) if vtype else (wf, xf)
        C = "0" if (first and ks == 0) else rs(accf(nt, mt))
        k("v_mfma_f32_16x16x32_bf16 %s, %s, %s, %s" % (rs(accf(nt, mt)), A, B, C))
        for f in fill[g]:
            k(f[1])
            if f[0] == "lds": lg.issue(f[2])
    lg.q = [("c",)+t[1:] for t in lg.q]
    return fbase + NF

def pack(d, a, b):
    return ["v_cvt_pk_bf16_f32 v%d, v%d, v%d" % (d, a, a+1), "v_cvt_pk_bf16_f32 v%d, v%d, v%d" % (d+1, a+2, a+3),
            "v_cvt_pk_bf16_f32 v%d, v%d, v%d" % (d+2, b, b+1), "v_cvt_pk_bf16_f32 v%d, v%d, v%d" % (d+3, b+2, b+3)]

def red4(a, b, c, d, t, op):
    return ["v_permlane16_swap_b32 v%d, v%d" % (a, b), "v_permlane16_swap_b32 v%d, v%d" % (c, d),
            "%s v%d, v%d, v%d" % (op, a, a, b), "%s v%d, v%d, v%d" % (op, c, c, d),
            "v_permlane32_swap_b32 v%d, v%d" % (a, c), "%s v%d, v%d, v%d" % (op, a, a, c),
            "v_mov_b32 v%d, v%d" % (c, a), "v_permlane32_swap_b32 v%d, v%d" % (a, c),
            "v_mov_b32 v%d, v%d" % (b, a), "v_mov_b32 v%d, v%d" % (d, c),
            "v_permlane16_swap_b32 v%d, v%d" % (a, b), "v_permlane16_swap_b32 v%d, v%d" % (c, d)]

def softmax2(P0, P1, T):
    st = [T, T+1, T+2, T+3]; E = [T+4, T+12]; L = []
    def both(fn):
        return merge(fn(P0, E[0], st[0], st[1]), fn(P1, E[1], st[2], st[3]))
    L += both(lambda P, e, mx, nm: ["v_max3_f32 v%d, v%d, v%d, v%d" % (mx, P, P+1, P+2), "v_max3_f32 v%d, -v%d, -v%d, -v%d" % (nm, P, P+1, P+2),
                                    "v_max3_f32 v%d, v%d, v%d, v%d" % (mx, mx, P+3, P+4), "v_max3_f32 v%d, v%d, -v%d, -v%d" % (nm, nm, P+3, P+4),
                                    "v_max3_f32 v%d, v%d, v%d, v%d" % (mx, mx, P+5, P+6), "v_max3_f32 v%d, v%d, -v%d, -v%d" % (nm, nm, P+5, P+6),
                                    "v_max_f32 v%d, v%d, v%d" % (mx, mx, P+7), "v_max_f32_e64 v%d, v%d, -v%d" % (nm, nm, P+7)])
    L += red4(*st, None, "v_max_f32")
    L += ["v_pk_mul_f32 v[%d:%d], v[%d:%d], s[50:51]" % (T, T+1, T, T+1), "v_pk_mul_f32 v[%d:%d], v[%d:%d], s[50:51]" % (T+2, T+3, T+2, T+3)]
    def fm(P, e, mx, nm):
        o = []
        for j in range(0, 8, 2):
            o.append("v_pk_fma_f32 v[%d:%d], v[%d:%d], s[50:51], v[%d:%d] op_sel:[0,0,1] op_sel_hi:[1,1,1] neg_lo:[1,0,1] neg_hi:[1,0,1]" % (e+j, e+j+1, P+j, P+j+1, mx, nm))
            o.append("v_pk_fma_f32 v[%d:%d], v[%d:%d], s[50:51], v[%d:%d] op_sel_hi:[1,1,0] neg_lo:[0,0,1] neg_hi:[0,0,1]" % (P+j, P+j+1, P+j, P+j+1, mx, nm))
        return o
    L += both(fm)
    L += both(lambda P, e, mx, nm: [x for j in range(8) for x in ("v_exp_f32 v%d, v%d" % (e+j, e+j), "v_exp_f32 v%d, v%d" % (P+j, P+j))])
    S0, S1 = T+20, T+24
    def sm(P, e, mx, nm):
        s = S0 if P == P0 else S1
        o = ["v_pk_add_f32 v[%d:%d], v[%d:%d], v[%d:%d]" % (s, s+1, P, P+1, P+2, P+3), "v_pk_add_f32 v[%d:%d], v[%d:%d], v[%d:%d]" % (s+2, s+3, e, e+1, e+2, e+3)]
        for j in (4, 6):
            o += ["v_pk_add_f32 v[%d:%d], v[%d:%d], v[%d:%d]" % (s, s+1, s, s+1, P+j, P+j+1), "v_pk_add_f32 v[%d:%d], v[%d:%d], v[%d:%d]" % (s+2, s+3, s+2, s+3, e+j, e+j+1)]
        o += ["v_add_f32 v%d, v%d, v%d" % (mx, s, s+1), "v_add_f32 v%d, v%d, v%d" % (nm, s+2, s+3)]
        return o
    L += both(sm)
    L += red4(*st, None, "v_add_f32")
    L += ["v_rcp_f32 v%d, v%d" % (x, x) for x in st]
    def nr(P, e, mx, nm):
        o = []
        for j in range(0, 8, 2):
            o.append("v_pk_mul_f32 v[%d:%d], v[%d:%d], v[%d:%d] op_sel_hi:[1,0]" % (P+j, P+j+1, P+j, P+j+1, mx, nm))
            o.append("v_pk_mul_f32 v[%d:%d], v[%d:%d], v[%d:%d] op_sel:[0,1] op_sel_hi:[1,1]" % (e+j, e+j+1, e+j, e+j+1, mx, nm))
        return o + pack(P, P, P+4) + pack(P+4, e, e+4)
    L += both(nr)
    return L

def spin(k, cx, name, vres, vexp, reload_text):
    k("v_cmp_gt_u32 vcc, v%d, v%d\ns_cbranch_vccnz %s\n%s_b:" % (vexp, vres, name, name))
    body = ["s_mov_b32 s88, 0", "%s_l:" % name, "s_sleep 4", reload_text, "s_waitcnt vmcnt(0)"]
    return body

def gen(name="f12_kernel", stamps=False, codebytes=98304, fine=None, stsc="sc1", nst=3, pf1=False, pfs=(2,3,4,4,5,6,7,7), coop=0, coopfirst=True, ntw=False, ntx=False, pfnt=False):
    NT_W[0] = "nt " if ntw else ""; NT_X[0] = "nt " if ntx else ""
    k = K(name, vgpr=512, accum=256, sgpr=96)
    cx = k2.Ctx(k)
    k("s_cmp_ge_u32 s2, 256\ns_cbranch_scc1 F_end")
    st = Stamps(k, stamps, 6);
    if stamps: k("v_mov_b32 v7, 0")
    st()
    k("s_load_dwordx4 s[4:7], s[0:1], 40")
    k("s_load_dwordx4 s[60:63], s[0:1], 56")
    k("s_load_dwordx2 s[72:73], s[0:1], 0")
    k("s_load_dwordx4 s[76:79], s[0:1], 8")
    k("s_load_dwordx2 s[64:65], s[0:1], 80")
    k("s_load_dwordx4 s[68:71], s[0:1], 96")
    k("s_load_dwordx2 s[80:81], s[0:1], 24\ns_load_dwordx2 s[82:83], s[0:1], 72")
    k("s_getpc_b64 s[90:91]\nv_min_u32 v61, 23, v0\nv_lshlrev_b32 v61, 7, v61\ns_lshr_b32 s58, s2, 3\ns_mul_i32 s58, s58, 3072\nv_add_u32 v61, s58, v61")
    k("global_load_dword v118, v61, s[90:91]")
    k("v_lshrrev_b32 v1, 6, v0\nv_and_b32 v2, 63, v0")
    k("v_readfirstlane_b32 s52, v1")
    k("s_and_b32 s53, s2, 31\ns_lshr_b32 s54, s2, 5\ns_sub_u32 s55, 15, s54")
    k("v_lshrrev_b32 v3, 3, v2\nv_and_b32 v4, 7, v2")
    k("s_lshl_b32 s56, s54, 2\ns_add_u32 s56, s56, s52\ns_lshl_b32 s57, s55, 2\ns_add_u32 s57, s57, s52")
    k("v_lshrrev_b32 v60, 1, v3\nv_xor_b32 v60, v60, v4\nv_xor_b32 v117, 4, v60\nv_lshlrev_b32 v60, 4, v60\nv_lshlrev_b32 v117, 4, v117")
    k("v_and_b32 v62, 2, v3\nv_xor_b32 v62, v62, v4\nv_xor_b32 v63, 4, v62\nv_lshlrev_b32 v62, 4, v62\nv_lshlrev_b32 v63, 4, v63")
    k("v_lshl_add_u32 v62, v3, 13, v62\nv_lshl_add_u32 v63, v3, 13, v63")
    def xoffs(dst, sh, perm):
        k("v_lshl_add_u32 v4, v3, %d, v60\nv_lshl_add_u32 v5, v3, %d, v117" % (sh, sh))
        k("s_lshl_b32 s58, s56, %d\ns_lshl_b32 s59, s57, %d" % (sh+5, sh+5))
        for p in range(8):
            k("s_add_u32 s66, s%d, %d\nv_add_u32 v%d, s66, v%d" % (58 if p < 4 else 59, (8*perm[p & 3] << sh) - (p & 3)*1024, dst+p, 4 + (p & 1)))
    xoffs(XD, 10, [0, 2, 1, 3])
    k("s_lshl_b32 s58, s53, 8\ns_and_b32 s59, s52, 1\ns_lshl_b32 s66, s59, 7\ns_add_u32 s66, s66, s58")
    for kg in range(8):
        k("s_add_u32 s67, s66, %d\nv_add_u32 v%d, s67, v%d" % (kg*65536 - (kg & 3)*1024, WD+kg, 62 + (kg & 1)))
    k("s_lshl_b32 s46, s52, 14\ns_lshl_b32 s41, s52, 13\ns_add_u32 s42, s41, 4096\ns_lshl_b32 s43, s52, 12\ns_add_u32 s44, s43, 16384")
    k("s_waitcnt lgkmcnt(0)")
    if fine == "pro": st()
    srd(k, 8, 4, 2048*512*2)
    k("s_cmp_lt_u32 s52, 2\ns_cselect_b32 s12, s60, s62\ns_cselect_b32 s13, s61, s63\ns_and_b32 s13, s13, 0xffff\ns_mov_b32 s14, 0x400000\ns_mov_b32 s15, 0x20000")
    def coop_pf():
        if not coop: return
        k("s_lshr_b32 s58, s2, 3\ns_lshl_b32 s59, s58, 2\ns_add_u32 s59, s59, s52\ns_lshl_b32 s59, s59, 14")
        k("v_lshrrev_b32 v119, 2, v2\nv_lshlrev_b32 v119, 10, v119\nv_and_b32 v120, 3, v2\nv_lshl_add_u32 v119, v120, 7, v119")
        k("buffer_load_dword v118, v119, s[8:11], s59 offen")
        if coop == 8: k("buffer_load_dword v118, v119, s[8:11], s59 offen offset:512")
        k("s_lshl_b32 s58, s58, 1\ns_and_b32 s59, s52, 1\ns_add_u32 s58, s58, s59\ns_mul_i32 s58, s58, %d\ns_and_b32 s59, s2, 7\ns_lshl_b32 s59, s59, 8\ns_add_u32 s58, s58, s59" % (coop*8192))
        k("v_lshrrev_b32 v119, 3, v2\nv_lshlrev_b32 v119, 13, v119\nv_bfe_u32 v120, v2, 1, 2\nv_lshl_add_u32 v119, v120, 11, v119\nv_and_b32 v120, 1, v2\nv_lshl_add_u32 v119, v120, 7, v119")
        if coop == 4: k("v_cmp_gt_u32 vcc, 32, v2\nv_mov_b32 v120, 0x%x\ns_nop 0\nv_cndmask_b32 v119, v120, v119, vcc" % BIGOFF)
        k("buffer_load_dword v118, v119, s[12:15], s58 offen")
    if coopfirst: coop_pf()
    wd, xd = dma_ops(0)
    for t in wd + xd: k(t)
    if not coopfirst: coop_pf()
    if fine == "pro": st()
    srd(k, 16, 6, 8 << 20); srd(k, 24, 76, 6 << 20); srd(k, 28, 72, 4 << 20); srd(k, 20, 70, WS_BYTES); srd(k, 36, 68, 256)
    srd(k, 60, 64, 2048); srd(k, 72, 78, 32*32*32*2)
    k("s_lshl_b32 s58, s53, 3\ns_lshl_b32 s59, s52, 1\ns_add_u32 s58, s58, s59\ns_cmp_lt_u32 s58, 128\ns_cselect_b32 s59, s54, s55\ns_lshl_b32 s59, s59, 7\ns_and_b32 s58, s58, 127\ns_add_u32 s58, s58, s59")
    k("s_lshl_b32 s76, s58, 2\ns_add_u32 s76, s76, 0x%x\ns_lshl_b32 s58, s58, 11\ns_add_u32 s59, s58, 2048" % WS_G)
    k("s_mov_b32 s77, s58\ns_mov_b32 s78, s59")
    gload = ["buffer_load_dwordx4 a[128:131], v61, s[28:31], s77 offen", "buffer_load_dwordx4 a[132:135], v61, s[28:31], s77 offen offset:16",
             "buffer_load_dwordx4 a[136:139], v61, s[28:31], s78 offen", "buffer_load_dwordx4 a[140:143], v61, s[28:31], s78 offen offset:16",
             "buffer_load_dwordx4 a[144:147], v61, s[60:63], 0 offen", "buffer_load_dwordx4 a[148:151], v61, s[60:63], 0 offen offset:16"]
    J, G_, R_, C_ = 104, 105, 106, 107
    k("v_and_b32 v%d, 15, v2\nv_lshrrev_b32 v%d, 4, v2\nv_bfe_u32 v%d, v2, 2, 2\nv_and_b32 v%d, 3, v2" % (J, G_, R_, C_))
    k("v_lshrrev_b32 v108, 1, v%d\nv_and_b32 v109, 1, v%d" % (G_, G_))
    k("v_lshlrev_b32 v110, 10, v108\nv_lshl_add_u32 v110, v109, 8, v110\nv_lshl_add_u32 v110, v%d, 1, v110\ns_lshl_b32 s79, s53, 11" % J)
    pload = ["buffer_load_ushort a%d, v59, s[72:75], s79 offen offset:%d" % (152+ft*8+s_, (8*(s_ >> 2) + (s_ & 3))*64 + ft*32) for ft in range(2) for s_ in range(8)]
    xoffs(XD2, 11, [0, 1, 2, 3])
    k("s_lshl_b32 s58, s53, 8\ns_and_b32 s59, s52, 1\ns_lshr_b32 s66, s52, 1\ns_lshl_b32 s66, s66, 7\ns_add_u32 s66, s66, s58\ns_lshl_b32 s59, s59, 18\ns_add_u32 s66, s66, s59")
    for p in range(4):
        k("s_add_u32 s67, s66, %d\nv_add_u32 v%d, s67, v%d" % (p*65536 - p*1024, WD2+p, 62 + (p & 1)))
    k("v_lshrrev_b32 v111, 2, v2\nv_lshrrev_b32 v112, 5, v2\nv_xor_b32 v112, v112, v%d\nv_lshlrev_b32 v112, 4, v112" % C_)
    k("s_movk_i32 s67, 6144\nv_mad_u32_u24 v111, v111, s67, v112")
    k("s_mul_i32 s66, s52, %d\ns_lshl_b32 s67, s53, 6\ns_add_u32 s66, s66, s67" % (16*6144))
    for cg in range(3):
        k("s_add_u32 s67, s66, %d\nv_add_u32 v%d, s67, v111" % (cg*1024, WD2+4+cg))
    k("v_lshrrev_b32 v111, 1, v%d\nv_xor_b32 v111, v111, v%d\nv_xor_b32 v112, 4, v111\nv_lshlrev_b32 v113, 7, v%d\nv_add_u32 v113, s46, v113" % (J, G_, J))
    k("v_lshl_add_u32 v%d, v111, 4, v113\nv_lshl_add_u32 v%d, v112, 4, v113" % (XA, XA+1))
    k("v_lshrrev_b32 v111, 1, v%d\nv_lshl_or_b32 v111, v109, 1, v111" % R_)
    k("v_lshlrev_b32 v113, 10, v%d\nv_lshl_add_u32 v113, v%d, 7, v113\nv_lshl_add_u32 v113, v%d, 3, v113\nv_add_u32 v113, 0x10000, v113" % (G_, R_, C_))
    for seg in range(4):
        k("v_xor_b32 v112, %d, v111\nv_lshl_add_u32 v%d, v112, 5, v113\nv_add_u32 v%d, 0x10000, v%d" % (seg, WA+seg, WA2+seg, WA+seg))
    k("v_lshlrev_b32 v113, 12, v108\nv_lshl_add_u32 v113, v109, 9, v113\nv_lshl_add_u32 v113, v%d, 6, v113" % R_)
    k("v_and_b32 v111, 1, v%d\nv_lshl_add_u32 v113, v111, 3, v113\nv_add_u32 v113, 0x14000, v113\nv_and_b32 v111, 2, v%d\nv_xor_b32 v111, v111, v109" % (C_, C_))
    k("v_lshl_add_u32 v%d, v111, 4, v113\nv_xor_b32 v111, 1, v111\nv_lshl_add_u32 v%d, v111, 4, v113" % (WB, WB+1))
    k("v_add_u32 v%d, 0x10000, v%d\nv_add_u32 v%d, 0x10000, v%d" % (WB2, WB, WB2+1, WB+1))
    k("s_lshl_b32 s58, s2, 2\ns_add_u32 s58, s58, s52\ns_lshl_b32 s59, s58, 10\ns_mul_i32 s58, s58, 768\nv_lshlrev_b32 v111, 7, v2\nv_mov_b32 v112, 0x%x" % BIGOFF)
    k("v_add_u32 v%d, s59, v111\nv_add_u32 v%d, s58, v111\nv_cmp_gt_u32 vcc, 8, v2\nv_cmp_gt_u32 s[66:67], 6, v2" % (VPF1, VPF2))
    k("v_cndmask_b32 v%d, v112, v%d, vcc\nv_cndmask_b32 v%d, v112, v%d, s[66:67]" % (VPF1, VPF1, VPF2, VPF2))
    k("v_lshlrev_b32 v111, 7, v2\ns_lshl_b32 s58, s53, 10\nv_add_u32 v1, s58, v111\nv_subrev_u32 v111, 8, v2\nv_lshlrev_b32 v111, 10, v111\ns_lshl_b32 s59, s54, 7\nv_add_u32 v111, s59, v111")
    k("v_cmp_gt_u32 vcc, 8, v2\ns_add_u32 s58, s58, s59\ns_cmp_eq_u32 s52, 0\nv_cndmask_b32 v1, v111, v1, vcc\ns_cselect_b32 s58, s58, 0x%x\ns_cselect_b32 s66, 0, 0x%x" % (BIGOFF, BIGOFF))
    k("v_cmp_gt_u32 vcc, 40, v2\nv_mov_b32 v%d, v112\nv_mov_b32 v113, v112\nv_cndmask_b32 v1, v112, v1, vcc\nv_writelane_b32 v%d, s58, 0\nv_writelane_b32 v113, s66, 0" % (VFLAG, VFLAG))
    k("s_memrealtime s[58:59]\nv_mov_b32 v61, v113\nv_mov_b32 v63, 0\ns_waitcnt lgkmcnt(0)\ns_or_b32 s89, s58, 1\nv_mov_b32 v62, s89")
    nonce = "buffer_atomic_cmpswap v[62:63], v61, s[36:39], 0 offen sc1"
    k("s_mov_b32 s50, %s\ns_mov_b32 s51, s50" % f32(LOG2E))
    k("v_and_b32 v111, 7, v%d\nv_lshlrev_b32 v%d, 4, v111\nv_lshrrev_b32 v111, 3, v%d\nv_lshl_add_u32 v%d, v111, 8, v%d\nv_lshl_add_u32 v%d, v108, 9, v%d\nv_lshl_add_u32 v%d, v109, 10, v%d" % (J, VK, J, VK, VK, VK, VK, VK, VK))
    k("v_lshlrev_b32 v%d, 4, v%d\nv_lshl_add_u32 v%d, v109, 9, v%d\nv_lshl_add_u32 v%d, v108, 12, v%d" % (VV, J, VV, VV, VV, VV))
    k("s_lshl_b32 s40, s53, 20\ns_lshl_b32 s84, s56, 14\ns_add_u32 s84, s84, s40\ns_lshl_b32 s85, s57, 14\ns_add_u32 s85, s85, s40")
    k("s_add_u32 s86, s84, 4096\ns_add_u32 s87, s85, 4096\ns_add_u32 s47, s84, 8192\ns_add_u32 s48, s85, 8192")
    k("v_cmp_eq_u32 vcc, 63, v2\nv_mov_b32 v3, 0\ns_nop 0\nv_cndmask_b32 v3, v112, v3, vcc")
    k("s_lshl_b32 s58, s2, 1\ns_and_b32 s59, s52, 1\ns_add_u32 s58, s58, s59\ns_mul_i32 s58, s58, 6144\ns_add_u32 s58, s58, 0x100000")
    k("v_lshlrev_b32 v111, 7, v2\nv_add_u32 v4, s58, v111\nv_cmp_gt_u32 vcc, 48, v2\ns_lshl_b32 s58, s2, 13\nv_lshlrev_b32 v5, 5, v0\nv_cndmask_b32 v4, v112, v4, vcc\nv_add_u32 v5, s58, v5")
    p1pf = ["buffer_load_dword v60, v4, s[12:15], 0 offen", "buffer_load_dword v60, v5, s[8:11], 0 offen"]
    k("v_mov_b32 v%d, v110\ns_mov_b32 s32, 0x%x\ns_mov_b32 s49, 0x%x" % (VPOLL, WS_FLAG, WS_FLAG + 0x8000))
    if fine == "pro": st()
    k("s_waitcnt vmcnt(0)\ns_barrier")
    lg = Lgkm()
    for q in range(6):
        for hb in range(2):
            a, imm = w_read(1, q, hb, 0)
            k("ds_read_b64_tr_b16 a[%d:%d], v%d offset:%d" % (WF+4*q+2*hb, WF+4*q+2*hb+1, a, imm)); lg.issue(("c", "W", q))
        if q == 0:
            for mt in range(4):
                k("ds_read_b128 a[%d:%d], v%d offset:%d" % (XF+4*mt, XF+4*mt+3, XA, mt*2048)); lg.issue(("c", "X", 0, mt))
    gate = []
    for n in range(8):
        gate += ["v_accvgpr_read_b32 v61, a%d" % (152+2*n), "v_accvgpr_read_b32 v62, a%d" % (153+2*n), "v_lshl_or_b32 v61, v62, 16, v61", "v_accvgpr_write_b32 a%d, v61" % (WPHI+n)]
    gate += ["v_mov_b32 v4, 0", "v_mov_b32 v5, 0"]
    for n in range(8):
        gate += ["v_accvgpr_read_b32 v61, a%d" % (144+n), "v_accvgpr_read_b32 v62, a%d" % (128+n), "v_accvgpr_read_b32 v63, a%d" % (136+n),
                 "v_dot2_f32_bf16 v4, v62, v61, v4", "v_dot2_f32_bf16 v5, v63, v61, v5"]
    gate2 = []
    for sh in ("row_shr:1", "row_shr:2", "row_shr:4", "row_shr:8"):
        gate2 += ["v_add_f32_dpp v%d, v%d, v%d %s row_mask:0xf bank_mask:0xf bound_ctrl:0" % (r, r, r, sh) for r in (4, 5)]
    gate2 += ["v_add_f32_dpp v%d, v%d, v%d row_bcast:15 row_mask:0xa bank_mask:0xf" % (r, r, r) for r in (4, 5)]
    gate2 += ["v_add_f32_dpp v%d, v%d, v%d row_bcast:31 row_mask:0xc bank_mask:0xf" % (r, r, r) for r in (4, 5)]
    gate2 += ["v_mul_f32 v4, s50, v4", "v_mul_f32 v5, s50, v5", "v_exp_f32 v4, -v4", "v_exp_f32 v5, -v5", "v_add_f32 v4, 1.0, v4", "v_add_f32 v5, 1.0, v5", "v_rcp_f32 v4, v4", "v_rcp_f32 v5, v5"]
    st()
    fb = 0
    stores = []
    for j in range(24):
        head = []; ab = None; spread = []; valu = []; hgap = 4; vx = 0
        if j == 0:
            wd, xd = dma_ops(1)
            head = wd + xd + (p1pf if pf1 else []) + [nonce]; hgap = 2
            vx = -(16)
        pfl = []
        for r in range(8):
            if pfs[r] == j:
                pfl += ["s_mov_b32 s66, 0x%x\nbuffer_load_dword v60, v%d, s[16:19], s66 offen" % (r << 20, VPF1), "s_mov_b32 s67, 0x%x\nbuffer_load_dword v60, v%d, s[24:27], s67 offen" % (r*786432, VPF2)]
        spread += pfl
        if j == 1: spread = ["v_lshlrev_b32 v61, 5, v2"] + gload + spread
        if j == 2: head = ["buffer_load_dword v62, off, s[36:39], 0 sc1"]
        if j == 2: spread += pload
        if j == 4: valu = ["v_readfirstlane_b32 s89, v62"] + gate[32:]
        if j == 5: valu = gate2 + gate[:32]
        if j == 6: spread.append("buffer_store_dwordx2 v[4:5], v3, s[20:23], s76 offen sc1")
        if j == 8:
            st()
            for dp in range(4):
                for mt in range(4):
                    a = acc1(2*dp, mt)[1]; b = acc1(2*dp+1, mt)[1]
                    for t in pack(a, a, b): k(t)
                    so = (84 if mt < 2 else 85) if dp < 2 else (86 if mt < 2 else 87)
                    stores.append("buffer_store_dwordx4 %s, v%d, s[20:23], s%d offen offset:%d %s" % (vr(a), VK, so, (dp & 1)*2048 + (mt & 1)*128, stsc))
            for dt in range(8):
                for mp in range(2):
                    f, a = acc1(8+dt, 2*mp); d = a
                    if f == "a":
                        t0 = XD + 8*mp
                        for n in range(8): k("v_accvgpr_read_b32 v%d, a%d" % (t0+n, a+n))
                        a = t0; d = acc1(4+dt, 2*mp+1)[1]
                    for t in pack(d, a, a+4): k(t)
                    stores.append("buffer_store_dwordx4 %s, v%d, s[20:23], s%d offen offset:%d %s" % (vr(d), VV, 47+mp, (dt >> 1)*1024 + (dt & 1)*256, stsc))
            st()
        if j >= 8: spread = pfl + stores[(j-8)*nst:(j-8)*nst+nst]
        jsig = 8 + (32+nst-1)//nst
        if j == jsig:
            def ab():
                k("v_mov_b32 v60, s89\nbuffer_store_dword v60, v%d, s[20:23], s32 offen sc1" % VFLAG)
        if j == 22:
            head = head + ["buffer_load_dword v%d, v1, s[20:23], s32 offen sc1" % VPOLL]; vx = -1
            def ab():
                k("v_cmp_gt_u32 s[66:67], 0x%x, v1\nv_cmp_ne_u32 vcc, s89, v%d\ns_and_b64 vcc, vcc, s[66:67]\ns_cbranch_vccnz F_spin1\nF_spin1_b:" % (BIGOFF, VPOLL))
        fb = pstep(k, lg, j, fb, head, ab, vm_extra=vx + (j == jsig+1), valu=valu, spread=spread, hgap=hgap)
        if fine == "steps" and j not in (7, 23): st()
    cx.ool.append(("F_spin1", ["s_mov_b32 s88, 0", "F_spin1_l:", "s_sleep 4", "buffer_load_dword v%d, v1, s[20:23], s32 offen sc1" % VPOLL, "s_waitcnt vmcnt(0)",
                               "v_cmp_ne_u32 vcc, s89, v%d" % VPOLL, "s_and_b64 vcc, vcc, s[66:67]", "s_add_u32 s88, s88, 1", "s_cmp_gt_u32 s88, 0x10000", "s_cbranch_scc1 F_spin1_b", "s_cbranch_vccnz F_spin1_l"]))
    st()
    k("v_readfirstlane_b32 s33, v%d" % VFLAG)
    k("v_lshlrev_b32 v%d, 4, v2\ns_lshl_b32 s41, s52, 12\nv_add_u32 v%d, s41, v%d" % (k2.VLANE16, k2.VDMA, k2.VLANE16))
    k("s_add_u32 s58, s55, 1\ns_lshl_b32 s58, s58, 16\ns_add_u32 s58, s58, s40")
    k("s_mov_b32 s8, s20\ns_mov_b32 s9, s21\ns_mov_b32 s10, s58\ns_mov_b32 s11, 0x20000")
    k("v_and_b32 v3, 31, v2\nv_lshrrev_b32 v4, 5, v2\nv_lshlrev_b32 v5, 2, v3")
    k("s_lshl_b32 s64, s56, 7\ns_lshl_b32 s65, s57, 7\ns_add_u32 s64, s64, 0x%x\ns_add_u32 s65, s65, 0x%x" % (WS_G, WS_G))
    k("s_waitcnt vmcnt(0) lgkmcnt(0)\ns_barrier")
    if fine == "e2": st()
    vq = []
    for u in range(6):
        for n in range(4):
            vq.append(("s_mov_b32 m0, s41\ns_add_u32 s41, s41, 0x4000\n" if n == 0 else "") + "buffer_load_dwordx4 v%d, s[8:11], s40 offen offset:%d lds" % (k2.VDMA, n*1024) + ("\ns_add_u32 s40, s40, 0x4000" if n == 3 else ""))
    vq.append("buffer_load_dword v%d, v5, s[20:23], s64 offen sc1" % k2.G1[0]); vq.append("buffer_load_dword v%d, v5, s[20:23], s65 offen sc1" % k2.G1[1])
    k0 = k; cnt = [0]
    def k(t, every=22):
        for l in t.split("\n"):
            k0(l); cnt[0] += 1
            if cnt[0] % every == 0 and vq and l.startswith("v_"): k0(vq.pop(0))
    for t in range(2):
        for mt in range(4):
            a = acc2(8+2*t, mt)[1]; b = acc2(9+2*t, mt)[1]
            for x in pack(a, a, b): k(x)
    PK, PQ = 96, 160
    for t, base in ((1, PK), (0, PQ)):
        for mt in range(4):
            for ft in range(2):
                k("v_mfma_f32_16x16x32_bf16 %s, %s, %s, 0" % (vr(base + mt*8 + ft*4), vr(WPHI+4*ft, 4, "a"), vr(acc2(8+2*t, mt)[1])))
    if fine == "e2": st()
    k("s_mov_b32 s60, %s\ns_mov_b32 s61, s60" % f32(LOG2E * 128 ** -0.5))
    TQ = 192
    n_ = 0
    for fr in range(2):
        for dp in range(4):
            dst = (k2.QA, k2.QB)[fr] + 8*dp
            for b in range(2):
                mt = 2*fr + b; t = TQ + 8*(n_ % 4); n_ += 1
                for h2 in range(2):
                    a = acc2(2*dp + h2, mt)[1]
                    for n in range(4): k("v_accvgpr_read_b32 v%d, a%d" % (t + 4*h2 + n, a + n))
                for n in range(0, 8, 2): k("v_pk_mul_f32 v[%d:%d], v[%d:%d], s[60:61]" % (t+n, t+n+1, t+n, t+n+1))
                for x in pack(dst + 4*b, t, t+4): k(x)
            if dp or fr:
                pd = prev
                for n in range(4): k("v_permlane16_swap_b32 v%d, v%d" % (pd+n, pd+4+n))
            prev = dst
    st()
    VCH = 128
    for p in range(2):
        for tau in range(2):
            a = acc2(12+tau, 2*p)[1]; t = TQ + 8*((p*2+tau) % 2)
            for n in range(8): k("v_accvgpr_read_b32 v%d, a%d" % (t+n, a+n))
            for x in pack(VCH + (p*2+tau)*4, t, t+4): k(x)
    for n in range(4): k("v_permlane16_swap_b32 v%d, v%d" % (prev+n, prev+4+n))
    SCR = 98304
    k("v_and_b32 v12, 15, v2\nv_lshrrev_b32 v13, 4, v2\ns_mul_i32 s62, s52, 8704\ns_add_u32 s62, s62, %d\nv_mov_b32 v14, s62\ns_movk_i32 s62, 136" % SCR)
    k("v_mad_u32_u24 v12, v12, s62, v14\nv_lshl_add_u32 v12, v13, 3, v12")
    k("v_lshrrev_b32 v13, 2, v2\nv_mad_u32_u24 v13, v13, s62, v14\nv_and_b32 v15, 3, v2\nv_lshl_add_u32 v13, v15, 3, v13")
    TA, TB = 192, 80
    TB = None
    if fine == "e2": st()
    L = merge(softmax2(PK, PK+8, 192), softmax2(PK+16, PK+24, 228))
    for x in L: k(x)
    if fine == "e2": st()
    for m in range(4):
        for sg in range(2):
            for ft in range(2):
                b = PK + 8*m + 4*sg + 2*ft
                k("ds_write_b64 v12, v[%d:%d] offset:%d" % (b, b+1, m*16*136 + sg*64 + ft*32))
    k("v_mov_b32 v144, 0x3f803f80\nv_mov_b32 v145, v144\nv_mov_b32 v146, v144\nv_mov_b32 v147, v144")
    k("s_waitcnt lgkmcnt(0)")
    AFa = 64
    for p in range(2):
        for F in range(4):
            for hb in range(2):
                b = AFa + (p*4+F)*4 + 2*hb
                k("ds_read_b64_tr_b16 a[%d:%d], v13 offset:%d" % (b, b+1, (32*p+16*hb)*136 + 32*F))
    L = merge(softmax2(PQ, PQ+8, 192), softmax2(PQ+16, PQ+24, 228))
    cut = len(L)//3
    for x in L[:cut]: k(x)
    if fine == "e2": st()
    k("s_waitcnt lgkmcnt(0)\ns_barrier")
    def kva(t): return 96 + 4*t if t < 8 else 232 + 4*(t-8)
    mf = []
    for p in range(2):
        for F in range(4):
            for c in range(3):
                d = vr(kva(F*3+c), 4, "a"); B = vr(VCH + (p*2+c)*4) if c < 2 else vr(144)
                mf.append("v_mfma_f32_16x16x32_bf16 %s, %s, %s, %s" % (d, vr(AFa + (p*4+F)*4, 4, "a"), B, "0" if p == 0 else d))
    for x in mf: k(x)
    if fine == "e2": st()
    cut2 = cut + 40
    for x in L[cut:cut2]: k(x)
    k("s_mul_i32 s62, s52, 12288\ns_add_u32 s62, s62, %d\nv_add_u32 v12, s62, v%d" % (SCR, k2.VLANE16))
    for t in range(12): k("ds_write_b128 v12, %s offset:%d" % (vr(kva(t), 4, "a"), t*1024))
    for x in L[cut2:]: k(x)
    if fine == "e2": st()
    k("s_mul_i32 s62, s52, 3072\ns_add_u32 s63, s62, %d\nv_add_u32 v12, s63, v%d" % (SCR, k2.VLANE16))
    k("s_waitcnt lgkmcnt(0)\ns_barrier")
    for t in range(3):
        for w in range(4): k("ds_read_b128 %s, v12 offset:%d" % (vr(96 + (t*4+w)*4), w*12288 + t*1024))
    k("s_lshl_b32 s58, s53, 3\ns_add_u32 s58, s58, s54\ns_mul_i32 s58, s58, 12288\ns_add_u32 s58, s58, s62\ns_add_u32 s58, s58, 0x%x" % WS_KVP)
    for r in range(64): k("v_accvgpr_write_b32 a%d, 0" % r)
    assert not vq
    k = k0
    k("s_waitcnt lgkmcnt(0)")
    for t in range(3):
        b = 96 + t*16
        for w in range(1, 4):
            for r in (0, 2): k("v_pk_add_f32 v[%d:%d], v[%d:%d], v[%d:%d]" % (b+r, b+r+1, b+r, b+r+1, b+4*w+r, b+4*w+r+1))
        k("buffer_store_dwordx4 %s, v%d, s[20:23], s58 offen offset:%d sc1" % (vr(b), k2.VLANE16, t*1024))
    st()
    k2.attention(k, cx, st, younger=3, PQ=PQ)
    k3f.outproj(k, cx, st)
    st.store(20, 52, 0)
    k("F_end:\ns_endpgm")
    k2.emit_ool(k, cx)
    rep = finish(k)
    return k, rep
```

```python
from common import *

XD, WD, XD2, WD2, XA, WA, WB, WPHI = 8, 16, 24, 32, 40, 42, 46, 48
VJ, VG, VR_, VC = 56, 57, 58, 59
XF, WF = 64, 96
NWB = 8
def acc(nt, mt):
    return ("v", 64 + (nt*4+mt)*4) if nt < 12 else ("a", ((nt-12)*4+mt)*4)
def accs(nt, mt):
    f, b = acc(nt, mt); return vr(b, 4, f)

def w_read(part, q, NT, hb):
    ks, nt = divmod(q, NT)
    if part == 1 or nt < 8:
        return WA + (nt & 3), (nt >> 2)*8192 + ks*4096 + hb*512
    cg, seg = divmod(nt-8, 2)
    return WB + seg, ks*8192 + cg*1024 + hb*256

def alloc(NG, streams, reserve, cap=2):
    fill = [[] for _ in range(NG)]
    pos = [0]*len(streams)
    for g in range(NG):
        room = cap - reserve.get(g, 0); mem = 1
        progress = True
        while room > 0 and progress:
            progress = False
            for si, st in enumerate(streams):
                if pos[si] >= len(st) or room <= 0: continue
                it = st[pos[si]]
                if it[3] > g: continue
                ismem = it[0] in ("lds", "vmem")
                if ismem and mem <= 0: continue
                if it[0] == "vmem" and any("m0" in x[1].split(",")[0] for x in fill[g]): continue
                assert g <= it[4], ("deadline", it, g)
                fill[g].append(it); pos[si] += 1; room -= 1; mem -= ismem; progress = True
    for si, st in enumerate(streams): assert pos[si] == len(st), ("unplaced", st[pos[si]:])
    return fill

def micro(texts, g0, g1, deadline):
    out = []
    for n, t in enumerate(texts):
        e = g0 + (n*(g1-g0))//len(texts)
        for l in t.split("\n"):
            if l.startswith("s_nop"): continue
            kind = "vmem" if l.startswith(("buffer", "global")) else ("valu" if l.startswith("v_") else "salu")
            out.append((kind, l, None, e, deadline))
    return out

def step(k, lg, part, par, fbase, first, dma, vmw, nextpart, last=False, extra=None, accf=None):
    NT = 16 if part == 1 else 14
    NTn = 16 if nextpart == 1 else 14
    NF = 2*NT; NG = 4*NF; D = 6
    accf = accf or accs
    def wrd(p, q, nt_, fb, tagpre, e, dl):
        out = []
        buf = WF + 4*((fb+q) % NWB)
        for hb in range(2):
            a, imm = w_read(p, q, nt_, hb)
            out.append(("lds", "ds_read_b64_tr_b16 a[%d:%d], v%d offset:%d" % (buf+2*hb, buf+2*hb+1, a, imm), (tagpre, "W", q), e + 2*hb, dl))
        return out
    def xrd(ks, mt, slot, tagpre, e, dl):
        b = XF + 16*ks + 4*mt
        return ("lds", "ds_read_b128 a[%d:%d], v%d offset:%d" % (b, b+3, XA+ks, slot*8192 + mt*2048), (tagpre, "X", ks, mt), e, dl)
    bar = 4*(NF-4)
    sW = []
    for q in range(NF - D): sW += wrd(part, q+D, NT, fbase, "c", 4*q, 4*q+5)
    sX = [xrd(1, mt, par, "c", 4*(2+mt)+1, 4*NT-12) for mt in range(4)]
    wd, xd = dma
    sD = []
    if extra: sD += micro(extra[0], 1, 3, bar-1) if extra[0] else []
    if wd: sD += micro(wd, 3, 4*NT-2, bar-1)
    if xd: sD += micro(xd, 4*NT+3, bar-4, bar-1)
    sE = micro(extra[1], 6, NG-6, NG-1) if (extra and extra[1]) else []
    sR = []
    reserve = {g: 1 for g in range(7, NG, 8)}
    if not last:
        rot = ["s_add_u32 s44, s44, 1", "s_cmp_eq_u32 s44, 3", "s_cselect_b32 s43, s48, s49", "s_cselect_b32 s44, 0, s44"]
        sR = [("salu", t, None, 0, 2) for t in rot]
        sR += [("valu", "v_add_u32 v%d, s43, v%d" % (WA+n, WA+n), None, 4*(NF-D)-1, bar-1) for n in range(6)]
        nxt = wrd(nextpart, 0, NTn, fbase+NF, "n", bar, NG-1) + [xrd(0, mt, 1-par, "n", bar, NG-1) for mt in range(4)]
        for q in range(1, D): nxt += wrd(nextpart, q, NTn, fbase+NF, "n", bar + (0 if q < 4 else 4*(q-3)), NG-1)
        nxt = [(x[0], x[1], x[2], max(bar, x[3] - (2 if x[3] > bar and x[3] % 4 == 2 else 0)), x[4]) for x in nxt]
        sW += nxt
        reserve[bar-1] = 2
    fill = alloc(NG, [sW, sR, sX, sD, sE], reserve)
    for g in range(NG):
        q, mt = divmod(g, 4); ks, nt = divmod(q, NT)
        if g == bar and not last:
            k("s_waitcnt lgkmcnt(0) vmcnt(%d)\ns_barrier" % vmw); lg.drain()
        if g % 8 == 0:
            nd = {("c", "W", q), ("c", "W", q+1)}
            for qq in (q, q+1):
                if qq % NT == 0: nd |= {("c", "X", qq // NT, m) for m in range(4)}
            w = lg.need(nd)
            if w: k(w)
        assert lg.need({("c", "W", q), ("c", "X", ks, mt)}) is None
        wf = vr(WF + 4*((fbase+q) % NWB), 4, "a"); xf = vr(XF + 16*ks + 4*mt, 4, "a")
        vtype = (part == 1 and nt >= 8) or (part == 2 and nt >= 12)
        A, B = (xf, wf) if vtype else (wf, xf)
        C = "0" if (first and ks == 0) else accf(nt, mt)
        k("v_mfma_f32_16x16x32_bf16 %s, %s, %s, %s" % (accf(nt, mt), A, B, C))
        for f in fill[g]:
            k(f[1])
            if f[0] == "lds": lg.issue(f[2])
    lg.q = [("c",)+t[1:] for t in lg.q]
    return fbase + NF

def dma_lists(par, nb):
    wd = []
    for n in range(4 + nb):
        t = ""
        if n == 0: t += "s_add_u32 m0, s40, s41\ns_nop 0\n"
        if n == 4: t += "s_add_u32 m0, s40, s42\ns_nop 0\n"
        t += "buffer_load_dwordx4 v%d, s[%d:%d], s%d offen offset:%d lds" % (WD+n, 12 if n < 4 else 16, 15 if n < 4 else 19, 34 if n < 4 else 35, (n % 4)*1024)
        if n == 3: t += "\ns_add_u32 s34, s34, s36"
        if n == 3+nb:
            t += "\ns_add_u32 s35, s35, s37\ns_add_u32 s40, s40, 0x8000\ns_cmp_eq_u32 s40, 0x28000\ns_cselect_b32 s40, 0x10000, s40"
        wd.append(t)
    xd = []
    for n in range(8):
        t = ""
        if n % 4 == 0: t += "s_add_u32 m0, s46, %d\ns_nop 0\n" % (par*8192 + n*1024)
        t += "buffer_load_dwordx4 v%d, s[8:11], s33 offen offset:%d lds" % (XD+n, (n % 4)*1024)
        if n == 7: t += "\ns_add_u32 s33, s33, 128\ns_cmp_eq_u32 s33, 2048\ns_cselect_b32 s33, 0x%x, s33" % BIGOFF
        xd.append(t)
    return wd, xd

def softmax_pm(P, T, out):
    mx, mn, t0, t1 = T, T+1, T+2, T+3
    E = T+4
    L = []
    L += ["v_max3_f32 v%d, v%d, v%d, v%d" % (mx, P, P+1, P+2), "v_min3_f32 v%d, v%d, v%d, v%d" % (mn, P, P+1, P+2)]
    L += ["v_max3_f32 v%d, v%d, v%d, v%d" % (mx, mx, P+3, P+4), "v_min3_f32 v%d, v%d, v%d, v%d" % (mn, mn, P+3, P+4)]
    L += ["v_max3_f32 v%d, v%d, v%d, v%d" % (mx, mx, P+5, P+6), "v_min3_f32 v%d, v%d, v%d, v%d" % (mn, mn, P+5, P+6)]
    L += ["v_max_f32 v%d, v%d, v%d" % (mx, mx, P+7), "v_min_f32 v%d, v%d, v%d" % (mn, mn, P+7)]
    def xred(a, b, opa, opb):
        M = []
        for sw in ("v_permlane16_swap_b32", "v_permlane32_swap_b32"):
            M += ["v_mov_b32 v%d, v%d" % (t0, a), "v_mov_b32 v%d, v%d" % (t1, b)]
            M += ["%s v%d, v%d" % (sw, a, t0), "%s v%d, v%d" % (sw, b, t1)]
            M += ["%s v%d, v%d, v%d" % (opa, a, a, t0), "%s v%d, v%d, v%d" % (opb, b, b, t1)]
        return M
    L += xred(mx, mn, "v_max_f32", "v_min_f32")
    L += ["v_mul_f32 v%d, s50, v%d" % (mx, mx), "v_mul_f32 v%d, s50, v%d" % (mn, mn)]
    for j in range(8):
        L += ["v_fma_f32 v%d, -v%d, s50, v%d" % (E+j, P+j, mn), "v_fma_f32 v%d, v%d, s50, -v%d" % (P+j, P+j, mx)]
    for j in range(8):
        L += ["v_exp_f32 v%d, v%d" % (E+j, E+j), "v_exp_f32 v%d, v%d" % (P+j, P+j)]
    L += ["v_add_f32 v%d, v%d, v%d" % (mx, P, P+1), "v_add_f32 v%d, v%d, v%d" % (mn, E, E+1)]
    for j in range(2, 8):
        L += ["v_add_f32 v%d, v%d, v%d" % (mx, mx, P+j), "v_add_f32 v%d, v%d, v%d" % (mn, mn, E+j)]
    L += xred(mx, mn, "v_add_f32", "v_add_f32")
    L += ["v_rcp_f32 v%d, v%d" % (mx, mx), "v_rcp_f32 v%d, v%d" % (mn, mn)]
    for j in range(8):
        L += ["v_mul_f32 v%d, v%d, v%d" % (P+j, P+j, mx), "v_mul_f32 v%d, v%d, v%d" % (E+j, E+j, mn)]
    for j in range(4):
        L += ["v_cvt_pk_bf16_f32 v%d, v%d, v%d" % (out+j, P+2*j, P+2*j+1)]
    for j in range(4):
        L += ["v_cvt_pk_bf16_f32 v%d, v%d, v%d" % (out+4+j, E+2*j, E+2*j+1)]
    return L

def merge(*lists):
    out = []; n = max(len(l) for l in lists)
    for i in range(n):
        for l in lists:
            if i < len(l): out.append(l[i])
    return out

def gen_k1(name="k1_kernel", prefetch=True, stamps=False, wpf=True):
    k = K(name, vgpr=384, accum=256, sgpr=96)
    k("s_cmp_ge_u32 s2, 256\ns_cbranch_scc1 K1_end")
    st = Stamps(k, stamps)
    st()
    k("s_load_dwordx2 s[24:25], s[0:1], 0")
    k("s_load_dwordx4 s[28:31], s[0:1], 8")
    k("s_load_dwordx4 s[4:7], s[0:1], 40")
    k("s_load_dwordx4 s[60:63], s[0:1], 56")
    k("s_load_dwordx2 s[64:65], s[0:1], 80")
    k("s_load_dwordx2 s[66:67], s[0:1], 104")
    k("v_lshrrev_b32 v1, 6, v0\nv_and_b32 v2, 63, v0")
    k("v_readfirstlane_b32 s52, v1")
    k("s_and_b32 s53, s2, 31\ns_lshr_b32 s54, s2, 5")
    k("v_and_b32 v%d, 15, v2\nv_lshrrev_b32 v%d, 4, v2\nv_bfe_u32 v%d, v2, 2, 2\nv_and_b32 v%d, 3, v2" % (VJ, VG, VR_, VC))
    k("v_lshrrev_b32 v3, 3, v2\nv_and_b32 v4, 7, v2")
    k("s_lshl_b32 s55, s54, 7\ns_lshl_b32 s56, s52, 5\ns_add_u32 s55, s55, s56")
    k("s_sub_u32 s57, 15, s54\ns_lshl_b32 s57, s57, 7\ns_add_u32 s57, s57, s56")
    k("v_lshrrev_b32 v5, 1, v3\nv_xor_b32 v5, v5, v4\nv_xor_b32 v6, 4, v5\nv_lshlrev_b32 v5, 4, v5\nv_lshlrev_b32 v6, 4, v6")
    g = [0, 2, 1, 3]
    for (dst, sh, perm) in ((XD, 10, g), (XD2, 11, [0, 1, 2, 3])):
        for p in range(8):
            srow = 55 if p < 4 else 57
            k("s_add_u32 s58, s%d, %d\ns_lshl_b32 s58, s58, %d\ns_sub_u32 s58, s58, %d" % (srow, 8*perm[p & 3], sh, (p & 3)*1024))
            k("v_lshl_add_u32 v7, v3, %d, v%d\nv_add_u32 v%d, s58, v7" % (sh, 5 + (p & 1), dst+p))
    k("v_bfe_u32 v5, v3, 1, 1\nv_lshlrev_b32 v5, 1, v5\nv_xor_b32 v5, v5, v4\nv_xor_b32 v6, 4, v5")
    k("v_lshlrev_b32 v5, 4, v5\nv_lshlrev_b32 v6, 4, v6")
    k("v_lshl_add_u32 v5, v3, 13, v5\nv_lshl_add_u32 v6, v3, 13, v6")
    k("s_lshl_b32 s58, s53, 8\ns_and_b32 s59, s52, 1\ns_lshl_b32 s68, s59, 7\ns_add_u32 s68, s68, s58")
    for kg in range(8):
        k("s_add_u32 s69, s68, %d\nv_add_u32 v%d, s69, v%d" % (kg*65536 - (kg & 3)*1024, WD+kg, 5 + (kg & 1)))
    k("s_lshr_b32 s68, s52, 1\ns_lshl_b32 s68, s68, 7\ns_add_u32 s68, s68, s58\ns_lshl_b32 s59, s59, 18\ns_add_u32 s68, s68, s59")
    for p in range(4):
        k("s_add_u32 s69, s68, %d\nv_add_u32 v%d, s69, v%d" % (p*65536 - p*1024, WD2+p, 5 + (p & 1)))
    k("v_lshrrev_b32 v5, 2, v2\nv_lshrrev_b32 v6, 5, v2\nv_xor_b32 v6, v6, v%d\nv_lshlrev_b32 v6, 4, v6" % VC)
    k("s_movk_i32 s69, 6144\nv_mad_u32_u24 v5, v5, s69, v6")
    k("s_mul_i32 s68, s52, %d\ns_lshl_b32 s69, s53, 6\ns_add_u32 s68, s68, s69" % (16*6144))
    for cg in range(3):
        k("s_add_u32 s69, s68, %d\nv_add_u32 v%d, s69, v5" % (cg*1024, WD2+4+cg))
    k("v_mov_b32 v%d, 0x%x" % (WD2+7, BIGOFF))
    k("s_lshl_b32 s46, s52, 14")
    k("v_lshrrev_b32 v5, 1, v%d\nv_xor_b32 v5, v5, v%d\nv_xor_b32 v6, 4, v5" % (VJ, VG))
    k("v_lshlrev_b32 v7, 7, v%d\nv_add_u32 v7, s46, v7" % VJ)
    k("v_lshl_add_u32 v%d, v5, 4, v7\nv_lshl_add_u32 v%d, v6, 4, v7" % (XA, XA+1))
    k("v_lshrrev_b32 v5, 1, v%d\nv_and_b32 v6, 1, v%d\nv_lshl_or_b32 v5, v6, 1, v5" % (VR_, VG))
    k("v_lshlrev_b32 v7, 10, v%d\nv_lshl_add_u32 v7, v%d, 7, v7\nv_lshl_add_u32 v7, v%d, 3, v7\nv_add_u32 v7, 0x10000, v7" % (VG, VR_, VC))
    for seg in range(4):
        k("v_xor_b32 v6, %d, v5\nv_lshl_add_u32 v%d, v6, 5, v7" % (seg, WA+seg))
    k("v_lshrrev_b32 v5, 1, v%d\nv_lshlrev_b32 v7, 12, v5\nv_and_b32 v6, 1, v%d" % (VG, VG))
    k("v_lshl_add_u32 v7, v6, 9, v7\nv_lshl_add_u32 v7, v%d, 6, v7" % VR_)
    k("v_and_b32 v5, 1, v%d\nv_lshl_add_u32 v7, v5, 3, v7\nv_add_u32 v7, 0x14000, v7" % VC)
    k("v_and_b32 v5, 2, v%d\nv_xor_b32 v5, v5, v6" % VC)
    k("v_lshl_add_u32 v%d, v5, 4, v7\nv_xor_b32 v5, 1, v5\nv_lshl_add_u32 v%d, v5, 4, v7" % (WB, WB+1))
    k("s_waitcnt lgkmcnt(0)")
    srd(k, 8, 4, 2048*512*2)
    k("s_cmp_lt_u32 s52, 2\ns_cselect_b32 s12, s60, s62\ns_cselect_b32 s13, s61, s63\ns_and_b32 s13, s13, 0xffff\ns_mov_b32 s14, 0x400000\ns_mov_b32 s15, 0x20000")
    k("s_mov_b32 s16, s12\ns_mov_b32 s17, s13\ns_mov_b32 s18, s14\ns_mov_b32 s19, 0x20000")
    srd(k, 20, 66, WS_BYTES)
    k("s_mov_b32 s26, s6\ns_mov_b32 s27, s7")
    k("s_mov_b32 s33, 0\ns_mov_b32 s34, 0\ns_mov_b32 s35, 0\ns_mov_b32 s36, 0x80000\ns_mov_b32 s37, 0x80000")
    k("s_mov_b32 s40, 0x10000\ns_lshl_b32 s41, s52, 13\ns_add_u32 s42, s41, 4096")
    k("s_mov_b32 s44, 0\ns_mov_b32 s48, 0xffff0000\ns_mov_b32 s49, 0x8000\ns_mov_b32 s50, %s" % f32(LOG2E))
    npf = code_prefetch(k, 24576, 104, None) if prefetch else 0
    srd(k, 72, 24, 2048*1024*2); srd(k, 76, 64, 2048); srd(k, 80, 30, 32*32*32*2)
    k("s_lshl_b32 s58, s2, 3\ns_lshl_b32 s59, s52, 1\ns_add_u32 s58, s58, s59\ns_lshl_b32 s70, s58, 2\ns_lshl_b32 s58, s58, 11\ns_add_u32 s59, s58, 2048")
    k("v_lshlrev_b32 v5, 5, v2")
    k("buffer_load_dwordx4 v[64:67], v5, s[72:75], s58 offen\nbuffer_load_dwordx4 v[68:71], v5, s[72:75], s58 offen offset:16")
    k("buffer_load_dwordx4 v[72:75], v5, s[72:75], s59 offen\nbuffer_load_dwordx4 v[76:79], v5, s[72:75], s59 offen offset:16")
    k("buffer_load_dwordx4 v[80:83], v5, s[76:79], 0 offen\nbuffer_load_dwordx4 v[84:87], v5, s[76:79], 0 offen offset:16")
    k("v_lshrrev_b32 v6, 1, v%d\nv_lshlrev_b32 v6, 10, v6\nv_and_b32 v7, 1, v%d\nv_lshl_add_u32 v6, v7, 8, v6\nv_lshl_add_u32 v6, v%d, 1, v6" % (VG, VG, VJ))
    k("s_lshl_b32 s58, s53, 11")
    for ft in range(2):
        for s in range(8):
            k("buffer_load_ushort v%d, v6, s[80:83], s58 offen offset:%d" % (88+ft*8+s, (8*(s >> 2) + (s & 3))*64 + ft*32))
    for par in range(2):
        wd, xd = dma_lists(par, 4)
        for t in wd + xd: k(t)
    nw = 0
    if wpf:
        srd(k, 72, 60, 4 << 20); srd(k, 76, 62, 4 << 20); srd(k, 80, 6, 8 << 20); srd(k, 84, 28, 6 << 20)
        k("v_lshlrev_b32 v60, 5, v0\ns_lshl_b32 s58, s2, 13\nbuffer_load_dword v61, v60, s[8:11], s58 offen")
        k("v_lshlrev_b32 v60, 6, v0\ns_lshl_b32 s58, s2, 14\nbuffer_load_dword v61, v60, s[72:75], s58 offen\nbuffer_load_dword v61, v60, s[76:79], s58 offen")
        k("v_lshlrev_b32 v60, 7, v0\ns_lshl_b32 s58, s2, 15\nbuffer_load_dword v61, v60, s[80:83], s58 offen\nbuffer_load_dword v61, v60, s[84:87], s58 offen")
        nw = 5
    for r in range(112, 256): k("v_mov_b32 v%d, 0" % r)
    for r in range(64): k("v_accvgpr_write_b32 a%d, 0" % r)
    k("s_waitcnt vmcnt(%d)" % (32+nw))
    for ft in range(2):
        for s2_ in range(4):
            k("v_lshl_or_b32 v%d, v%d, 16, v%d" % (WPHI+ft*4+s2_, 88+ft*8+2*s2_+1, 88+ft*8+2*s2_))
    k("v_mov_b32 v5, 0\nv_mov_b32 v6, 0")
    for n in range(8):
        k("v_dot2_f32_bf16 v5, v%d, v%d, v5\nv_dot2_f32_bf16 v6, v%d, v%d, v6" % (64+n, 80+n, 72+n, 80+n))
    k("s_nop 2")
    for sh in ("row_shr:1", "row_shr:2", "row_shr:4", "row_shr:8"):
        k("v_add_f32_dpp v5, v5, v5 %s row_mask:0xf bank_mask:0xf bound_ctrl:0\nv_add_f32_dpp v6, v6, v6 %s row_mask:0xf bank_mask:0xf bound_ctrl:0" % (sh, sh))
    k("v_add_f32_dpp v5, v5, v5 row_bcast:15 row_mask:0xa bank_mask:0xf\nv_add_f32_dpp v6, v6, v6 row_bcast:15 row_mask:0xa bank_mask:0xf")
    k("v_add_f32_dpp v5, v5, v5 row_bcast:31 row_mask:0xc bank_mask:0xf\nv_add_f32_dpp v6, v6, v6 row_bcast:31 row_mask:0xc bank_mask:0xf")
    k("v_mul_f32 v6, s50, v6\nv_mul_f32 v5, s50, v5\nv_exp_f32 v6, -v6\nv_exp_f32 v5, -v5\nv_add_f32 v7, 1.0, v6\nv_add_f32 v6, 1.0, v5\nv_rcp_f32 v7, v7\nv_rcp_f32 v6, v6")
    k("v_cmp_eq_u32 vcc, 63, v2\nv_mov_b32 v5, 0x%x\nv_mov_b32 v3, 0\nv_cndmask_b32 v5, v5, v3, vcc" % BIGOFF)
    k("s_add_u32 s70, s70, 0x%x\nbuffer_store_dwordx2 v[6:7], v5, s[20:23], s70 offen" % WS_G)
    for r in range(64, 112): k("v_mov_b32 v%d, 0" % r)
    k("s_waitcnt vmcnt(%d)\ns_barrier" % (17+nw))
    lg = Lgkm()
    def init_reads(part):
        NT = 16 if part == 1 else 14
        seq = []
        for q in range(6):
            for hb in range(2):
                a, imm = w_read(part, q, NT, hb)
                buf = WF + 4*q + 2*hb
                seq.append(("ds_read_b64_tr_b16 a[%d:%d], v%d offset:%d" % (buf, buf+1, a, imm), ("c", "W", q)))
            if q == 0:
                for mt in range(4):
                    seq.append(("ds_read_b128 a[%d:%d], v%d offset:%d" % (XF+4*mt, XF+4*mt+3, XA, mt*2048), ("c", "X", 0, mt)))
        for t, tag in seq: k(t); lg.issue(tag)
    st()
    init_reads(1)
    st0 = list(lg.q)
    k("s_mov_b32 s45, 0")
    k("K1_loop1:")
    k("s_cmp_lg_u32 s45, 3\ns_cbranch_scc1 K1_nosw")
    k("s_mov_b32 s8, s24\ns_and_b32 s9, s25, 0xffff\ns_mov_b32 s10, 0x400000")
    k("s_mov_b32 s12, s26\ns_and_b32 s13, s27, 0xffff\ns_mov_b32 s14, 0x800000")
    k("s_mov_b32 s16, s28\ns_and_b32 s17, s29, 0xffff\ns_mov_b32 s18, 0x600000")
    k("s_mov_b32 s33, 0\ns_mov_b32 s34, 0\ns_mov_b32 s35, 0\ns_mov_b32 s37, 0x60000")
    k("s_lshl_b32 s41, s52, 12\ns_add_u32 s42, s41, 16384")
    for n in range(16): k("v_mov_b32 v%d, v%d" % (XD+n, XD2+n))
    k("K1_nosw:")
    fb = 0
    for par in range(2):
        fb = step(k, lg, 1, par, fb, False, dma_lists(par, 4), 16, 1)
    assert lg.q == st0 and fb % NWB == 0
    k("s_add_u32 s45, s45, 1\ns_cmp_lt_u32 s45, 4\ns_cbranch_scc1 K1_loop1")
    st()
    k("s_lshl_b32 s68, s53, 20\ns_lshl_b32 s58, s55, 9\ns_add_u32 s58, s58, s68\ns_lshl_b32 s59, s57, 9\ns_add_u32 s59, s59, s68")
    k("v_and_b32 v5, 1, v%d\nv_lshrrev_b32 v6, 1, v%d" % (VG, VG))
    k("v_and_b32 v7, 7, v%d\nv_lshlrev_b32 v24, 4, v7\nv_lshrrev_b32 v7, 3, v%d\nv_lshl_add_u32 v24, v7, 8, v24" % (VJ, VJ))
    k("v_lshl_add_u32 v24, v6, 9, v24\nv_lshl_add_u32 v24, v5, 10, v24")
    k("v_lshlrev_b32 v25, 4, v%d\nv_lshl_add_u32 v25, v5, 9, v25\nv_lshl_add_u32 v25, v6, 12, v25" % VJ)
    k("v_lshlrev_b32 v26, 4, v%d\nv_lshl_add_u32 v26, v6, 9, v26\nv_lshl_add_u32 v26, v5, 10, v26" % VJ)
    k("s_add_u32 s68, s58, 4096\ns_add_u32 s69, s59, 4096\ns_add_u32 s70, s58, 8192\ns_add_u32 s71, s59, 8192")
    def pack(d, a, b):
        return ["v_cvt_pk_bf16_f32 v%d, v%d, v%d" % (d, a, a+1), "v_cvt_pk_bf16_f32 v%d, v%d, v%d" % (d+1, a+2, a+3),
                "v_cvt_pk_bf16_f32 v%d, v%d, v%d" % (d+2, b, b+1), "v_cvt_pk_bf16_f32 v%d, v%d, v%d" % (d+3, b+2, b+3)]
    for dp in range(4):
        for mt in range(4):
            a = acc(2*dp, mt)[1]; b = acc(2*dp+1, mt)[1]
            for t in pack(a, a, b): k(t)
            so = (58 if mt < 2 else 59) if dp < 2 else (68 if mt < 2 else 69)
            k("buffer_store_dwordx4 %s, v24, s[20:23], s%d offen offset:%d" % (vr(a), so, (dp & 1)*2048 + (mt & 1)*128))
    for dt in range(8):
        for mp in range(2):
            f, a = acc(8+dt, 2*mp)
            if f == "a":
                t0 = 64 + 8*((dt*2+mp) % 8)
                for n in range(8): k("v_accvgpr_read_b32 v%d, a%d" % (t0+n, a+n))
                a = t0
            for t in pack(a, a, a+4): k(t)
            k("buffer_store_dwordx4 %s, v25, s[20:23], s%d offen offset:%d" % (vr(a), 70+mp, (dt >> 1)*1024 + (dt & 1)*256))
    st()
    fb = step(k, lg, 2, 0, fb, True, dma_lists(0, 3), 15+32, 2)
    fb = step(k, lg, 2, 1, fb, False, dma_lists(1, 3), 15, 2)
    st2 = list(lg.q)
    k("s_mov_b32 s45, 0")
    k("K1_loop2:")
    for par in range(2):
        fb = step(k, lg, 2, par, fb, False, dma_lists(par, 3), 15, 2)
    assert lg.q == st2 and fb % NWB == 0
    k("s_add_u32 s45, s45, 1\ns_cmp_lt_u32 s45, 7\ns_cbranch_scc1 K1_loop2")
    st()
    k("s_lshl_b32 s68, s53, 19\ns_add_u32 s68, s68, 0x%x\ns_lshl_b32 s58, s55, 8\ns_add_u32 s58, s58, s68\ns_lshl_b32 s59, s57, 8\ns_add_u32 s59, s59, s68" % WS_Q)
    k("s_add_u32 s68, s58, 4096\ns_add_u32 s69, s59, 4096")
    k("s_mov_b32 s60, %s\ns_mov_b32 s61, s60" % f32(LOG2E * 128 ** -0.5))
    for dp in range(4):
        for mt in range(4):
            a = acc(2*dp, mt)[1]; b = acc(2*dp+1, mt)[1]
            for r in (a, a+2, b, b+2): k("v_pk_mul_f32 v[%d:%d], v[%d:%d], s[60:61]" % (r, r+1, r, r+1))
            for t in pack(a, a, b): k(t)
            so = (58 if mt < 2 else 59) if dp < 2 else (68 if mt < 2 else 69)
            k("buffer_store_dwordx4 %s, v26, s[20:23], s%d offen offset:%d" % (vr(a), so, (dp & 1)*2048 + (mt & 1)*256))
    st()
    for t in range(2):
        for mt in range(4):
            a = acc(8+2*t, mt)[1]; b = acc(9+2*t, mt)[1]
            for x in pack(a, a, b): k(x)
    PB = 64
    for t in (1, 0):
        for mt in range(4):
            for ft in range(2):
                d = PB + ((t*4+mt)*2+ft)*4
                k("v_mfma_f32_16x16x32_bf16 %s, %s, %s, 0" % (vr(d), vr(WPHI+4*ft), vr(acc(8+2*t, mt)[1])))
    VCH = 128
    for p in range(2):
        for tau in range(2):
            a = acc(12+tau, 2*p)[1]
            for n in range(8): k("v_accvgpr_read_b32 v%d, a%d" % (144+n, a+n))
            for x in pack(VCH + (p*2+tau)*4, 144, 148): k(x)
    k("s_waitcnt vmcnt(16) lgkmcnt(0)")
    k("s_movk_i32 s62, 136\nv_mov_b32 v5, s46\nv_mad_u32_u24 v27, v%d, s62, v5\nv_lshl_add_u32 v27, v%d, 3, v27" % (VJ, VG))
    k("v_lshl_add_u32 v6, v%d, 2, v%d\nv_mad_u32_u24 v28, v6, s62, v5\nv_lshl_add_u32 v28, v%d, 3, v28" % (VG, VR_, VC))
    T0, T1 = 152, 172
    for mt in range(0, 4, 2):
        P0 = PB + (4+mt)*8; P1 = PB + (4+mt+1)*8
        for x in merge(softmax_pm(P0, T0, T0+12), softmax_pm(P1, T1, T1+12)): k(x)
        for m, T in ((mt, T0), (mt+1, T1)):
            for sg in range(2):
                for ft in range(2):
                    k("ds_write_b64 v27, v[%d:%d] offset:%d" % (T+12+4*sg+2*ft, T+12+4*sg+2*ft+1, m*16*136 + sg*64 + ft*32))
    k("s_waitcnt lgkmcnt(0)")
    AF = 192
    for p in range(2):
        for F in range(4):
            for hb in range(2):
                b = AF + (p*4+F)*4 + 2*hb
                k("ds_read_b64_tr_b16 v[%d:%d], v28 offset:%d" % (b, b+1, (32*p+16*hb)*136 + 32*F))
    k("s_lshl_b32 s68, s53, 18\ns_add_u32 s68, s68, 0x%x\ns_lshl_b32 s58, s55, 7\ns_add_u32 s58, s58, s68\ns_lshl_b32 s59, s57, 7\ns_add_u32 s59, s59, s68" % WS_PHIQ)
    k("v_lshlrev_b32 v29, 4, v2")
    k("v_mov_b32 v224, 0x3f803f80\nv_mov_b32 v225, v224\nv_mov_b32 v226, v224\nv_mov_b32 v227, v224")
    KVA = 96
    first_q = True
    for mt in range(0, 4, 2):
        P0 = PB + mt*8; P1 = PB + (mt+1)*8
        for x in merge(softmax_pm(P0, T0, T0+12), softmax_pm(P1, T1, T1+12)): k(x)
        for m, T in ((mt, T0), (mt+1, T1)):
            for sg in range(2):
                k("buffer_store_dwordx4 %s, v29, s[20:23], s%d offen offset:%d" % (vr(T+12+4*sg), 58 if m < 2 else 59, (m & 1)*2048 + sg*1024))
        if first_q:
            first_q = False
            k("s_waitcnt lgkmcnt(0)")
            for p in range(2):
                for F in range(4):
                    for c in range(3):
                        d = vr(64 + (F*3+c)*4, 4, "a")
                        B = vr(VCH + (p*2+c)*4) if c < 2 else vr(224)
                        k("v_mfma_f32_16x16x32_bf16 %s, %s, %s, %s" % (d, vr(AF + (p*4+F)*4), B, "0" if p == 0 else d))
    st()
    k("s_barrier")
    k("s_mul_i32 s62, s52, 12288\ns_add_u32 s62, s62, 0x10000\nv_add_u32 v30, s62, v29")
    for t in range(12): k("ds_write_b128 v30, %s offset:%d" % (vr(64+4*t, 4, "a"), t*1024))
    k("s_waitcnt lgkmcnt(0)\ns_barrier")
    k("s_mul_i32 s62, s52, 3072\ns_add_u32 s63, s62, 0x10000\nv_add_u32 v30, s63, v29")
    for t in range(3):
        for w in range(4): k("ds_read_b128 %s, v30 offset:%d" % (vr(64 + (t*4+w)*4), w*12288 + t*1024))
    k("s_lshl_b32 s58, s53, 3\ns_add_u32 s58, s58, s54\ns_mul_i32 s58, s58, 12288\ns_add_u32 s58, s58, s62\ns_add_u32 s58, s58, 0x%x" % WS_KVP)
    k("s_waitcnt lgkmcnt(0)")
    for t in range(3):
        b = 64 + t*16
        for w in range(1, 4):
            for r in (0, 2): k("v_pk_add_f32 v[%d:%d], v[%d:%d], v[%d:%d]" % (b+r, b+r+1, b+r, b+r+1, b+4*w+r, b+4*w+r+1))
        k("buffer_store_dwordx4 %s, v29, s[20:23], s58 offen offset:%d" % (vr(b), t*1024))
    st()
    if stamps: k("s_waitcnt vmcnt(0)")
    st()
    st.store(20, 52, 0)
    k("K1_end:")
    rep = finish(k)
    return k, rep

if __name__ == "__main__":
    import sys
    k, rep = gen_k1(stamps=len(sys.argv) > 1)
    print(len(k.lines), "lines;", len(rep), "nops inserted")
    for r in rep[:60]: print(r)
    emit_file("k1.s", [(k, 256, 256, 163840)])
```

```python
from common import *

OA, OB = 0, 64
KPOOL = [128 + 4*n for n in range(16)]
VPOOL = [192 + 4*n for n in range(16)]
QA, QB = 16, 48
def S(par, f): return 80 + par*32 + f*16
NEG = [144, 160, 176]
def P(f): return 192 + 8*f
E0 = 208
G1 = [224, 225]; TS = [226, 227]; L = [228, 229]; THR = [230, 231]
VI = [8, 9]; VLANE16 = 10; VDMA = 11; VST = 12
RT = 232
BAR = 22
BIG = 2.0**64

G0 = [-10, 6]
def softmax_sched(par, f):
    s = S(par, f); e = E0 + 8*f; p = P(f); ts = TS[f]; g0 = G0[f]
    ops = []
    for j in range(16): ops.append((g0 + j, "e", "v_exp_f32 v%d, v%d" % (e + j % 8, s + j)))
    for j in range(0, 16, 2):
        a, b = e + j % 8, e + (j+1) % 8
        g = g0 + j + 2
        cv = "v_cvt_pk_bf16_f32 v%d, v%d, v%d" % (p + j//2, a, b)
        if j == 0:
            ops += [(g, "p", "v_add_f32 v%d, v%d, v%d" % (ts, a, b)), (g+1, "p", cv)]
        else:
            ops += [(g, "p", "v_add_f32 v%d, v%d, v%d" % (ts, ts, a)), (g + (j < 14), "p", "v_add_f32 v%d, v%d, v%d" % (ts, ts, b)), (g + (j == 14), "p", cv)]
    ops.append((g0 + 16, "k", "v_cmp_nge_f32 vcc, s43, v%d" % ts))
    ops.sort(key=lambda x: (x[0], {"p": 0, "k": 1, "e": 2}[x[1]]))
    return ops

def prep_list(neg, thr, t0=RT):
    out = []
    for r in range(16):
        kap = 8*(r >> 2) + (r & 3)
        t = t0 + (r % 4)
        out.append("v_add_f32 v%d, %s, v%d" % (t, f32(-kap*BIG), thr))
        out.append("v_min_f32 v%d, v%d, v%d" % (neg + r, neg + r, t))
    return out

def k_reads(kind, vi):
    if kind == "dual":
        return [("ds_read_b128 %s, v%d offset:%d" % (vr(KPOOL[n], 4, "a"), vi, n*1024), ("K", n)) for n in range(8)]
    return [("ds_read_b128 %s, v%d offset:%d" % (vr(KPOOL[n], 4, "a"), vi, (n & 1)*16384 + (n >> 1)*1024), ("K", n)) for n in range(16)]
NTAIL = {"dual": 8, "single": 10}

class Ctx:
    def __init__(self, k): self.k = k; self.rare = []; self.n = 0; self.ool = []

def rowmax(k, s, d, t):
    k("v_max3_f32 v%d, v%d, v%d, v%d" % (d, s, s+1, s+2))
    for j in range(3, 15, 2): k("v_max3_f32 v%d, v%d, v%d, v%d" % (d, d, s+j, s+j+1))
    k("v_max_f32 v%d, v%d, v%d" % (d, d, s+15))
    k("v_mov_b32 v%d, v%d\nv_permlane32_swap_b32 v%d, v%d\nv_max_f32 v%d, v%d, v%d" % (t, d, d, t, d, d, t))

def emit_rare(k, lab, back, par, f, qk, pv, redo):
    k("%s:" % lab)
    k("s_nop 15\ns_nop 15")
    d, t = RT, RT+1
    rowmax(k, S(par, f), d, t)
    k("v_max_f32 v%d, 0, v%d" % (d, d))
    isB = (pv == "single") or f == 1
    adj = [S(par, f)]
    if pv == "single": adj.append(S(par, 1-f))
    if qk == "dual": adj.append(S(1-par, f))
    elif qk == "single" and isB: adj += [S(1-par, 0), S(1-par, 1)]
    if qk != "none": adj += [NEG[1], NEG[2]] if isB else [NEG[0]]
    for b in adj:
        for j in range(16): k("v_sub_f32 v%d, v%d, v%d" % (b+j, b+j, d))
    k("v_exp_f32 v%d, -v%d" % (t, d))
    o = OB if isB else OA; l = L[1 if isB else 0]
    k("s_nop 0\nv_mul_f32 v%d, v%d, v%d" % (l, l, t))
    for j in range(0, 64, 4):
        for n in range(4): k("v_accvgpr_read_b32 v%d, a%d" % (RT+4+n, o+j+n))
        for n in range(4): k("v_mul_f32 v%d, v%d, v%d" % (RT+4+n, RT+4+n, t))
        for n in range(4): k("v_accvgpr_write_b32 a%d, v%d" % (o+j+n, RT+4+n))
    for x in redo: k(x)
    k("s_nop 3\ns_branch %s" % back)

def flag_store(kind):
    return ["v_mov_b32 v13, 0x%x" % BIGOFF, "v_writelane_b32 v13, s33, 0", "v_mov_b32 v5, s89", "s_mov_b32 s66, 0x%x" % (WS_FLAG + kind*0x8000),
            "buffer_store_dword v5, v13, s[20:23], s66 offen sc1"]
def poll_check(k, cx, name, vres, poll, mask):
    k("v_cmp_ne_u32 vcc, s89, v%d\ns_and_b64 vcc, vcc, s[%d:%d]\ns_cbranch_vccnz %s\n%s_b:" % (vres, mask, mask+1, name, name))
    cx.ool.append((name, ["s_mov_b32 s88, 0", "%s_l:" % name, "s_sleep 2", poll, "s_waitcnt vmcnt(0)", "v_cmp_ne_u32 vcc, s89, v%d" % vres, "s_and_b64 vcc, vcc, s[%d:%d]" % (mask, mask+1),
                          "s_add_u32 s88, s88, 1", "s_cmp_gt_u32 s88, 0x10000", "s_cbranch_scc1 %s_b" % name, "s_cbranch_vccnz %s_l" % name]))

def step(cx, lg, par, qk, pv, nextqk, prepA=False, prepB=False, extra=None, vmw=8, sig=False, sig2=False):
    k = cx.k
    mf = []; needs = []
    if qk == "dual":
        for ks in range(8):
            for f in range(2):
                d = vr(S(1-par, f), 16); c = vr(NEG[f], 16) if ks == 0 else d
                mf.append("v_mfma_f32_32x32x16_bf16 %s, %s, %s, %s" % (d, vr(KPOOL[ks], 4, "a"), vr((QA, QB)[f] + 4*ks), c)); needs.append({("K", ks)})
    elif qk == "single":
        for ks in range(8):
            for f in range(2):
                d = vr(S(1-par, f), 16); c = vr(NEG[1+f], 16) if ks == 0 else d
                mf.append("v_mfma_f32_32x32x16_bf16 %s, %s, %s, %s" % (d, vr(KPOOL[2*ks+f], 4, "a"), vr(QB + 4*ks), c)); needs.append({("K", 2*ks+f)})
    else:
        for n in range(16): mf.append(None); needs.append(set())
    for f in range(2):
        for u in range(2):
            for db in range(4):
                n = u*4 + db + (8*f if pv == "single" else 0)
                o = (OB if (pv == "single" or f == 1) else OA) + 16*db
                mf.append("v_mfma_f32_32x32x16_bf16 %s, %s, %s, %s" % (vr(o, 16, "a"), vr(VPOOL[n], 4, "a"), vr(P(f) + 4*u), vr(o, 16, "a"))); needs.append({("V", n)})
    fill = [[] for _ in range(32)]
    if qk != "none":
        rest = k_reads(qk, VI[1-par])[NTAIL[qk]:]
        for n, (t, tag) in enumerate(rest): fill[n].append(("lds", t, tag))
    nv = 8 if pv == "dual" else 16
    for n in range(nv):
        t = "ds_read_b128 %s, v%d offset:%d" % (vr(VPOOL[n], 4, "a"), VI[par], 8192 + (n >> 3)*16384 + (n & 7)*1024)
        g = (3 + (n*10)//8) if pv == "dual" else (3 + n)
        if qk == "none": g = n if n < 8 else 8 + (n-8)//2
        fill[g].append(("lds", t, ("V", n)))
    if nextqk != "end":
        nd = 4 if pv == "dual" else 8
        for n in range(nd):
            t = ""
            if n % 4 == 0: t = "s_mov_b32 m0, s41\ns_add_u32 s41, s41, 0x4000\ns_and_b32 s41, s41, 0x1ffff\n"
            t += "buffer_load_dwordx4 v%d, s[8:11], s40 offen offset:%d lds" % (VDMA, (n % 4)*1024)
            if n % 4 == 3: t += "\ns_add_u32 s40, s40, 0x4000"
            fill[1 + (n*(BAR-2))//nd].append(("raw", t, None))
    if nextqk in ("dual", "single"):
        fill[BAR-1].append(("raw", "v_add_u32 v%d, s42, v%d\ns_add_u32 s42, s42, 0x%x\ns_and_b32 s42, s42, 0x1ffff" % (VI[par], VLANE16, 0x4000 if nextqk == "dual" else 0x8000), None))
        for n, (t, tag) in enumerate(k_reads(nextqk, VI[par])[:NTAIL[nextqk]]): fill[BAR+n].append(("lds", t, ("n",)+tag))
    for f in range(2):
        for (g, kind, t) in softmax_sched(par, f):
            if g >= 0: fill[g].append(("valu" + kind, t, f))
        fill[G0[f] + 17].append(("check", f, None))
    if qk != "none":
        for (g, kind, t) in softmax_sched(1-par, 0):
            if g < 0: fill[g + 32].append(("valu" + kind, t, "n"))
    if extra:
        for g, t in extra: fill[g].append(("raw", t, None))
    done = {0: [t for g, _, t in softmax_sched(par, 0) if g < 0], 1: [], "n": []}
    for g in range(32):
        if g == BAR and nextqk != "end":
            if sig:
                k("s_cmp_eq_u32 s44, 1\ns_cbranch_scc1 K2_sig")
                cx.ool.append(("K2_sig", ["s_waitcnt lgkmcnt(0) vmcnt(8)", "s_barrier"] + flag_store(1)))
            k("s_waitcnt lgkmcnt(0) vmcnt(%d)\ns_barrier" % vmw); lg.drain()
            if sig: k("K2_sig_b:")
            if sig2:
                k("s_cmp_eq_u32 s44, s79\ns_cbranch_scc1 K2_sig2\nK2_sig2_b:")
                cx.ool.append(("K2_sig2", flag_store(2)))
        w = lg.need(needs[g])
        if w: k(w)
        if mf[g]: k(mf[g])
        for kind, t, tag in sorted(fill[g], key=lambda x: {"lds": 0, "raw": 1, "valup": 2, "valuk": 3, "check": 4, "value": 5}[x[0]]):
            if kind == "check":
                f = t; cx.n += 1
                lab, back = "K2_rare%d" % cx.n, "K2_back%d" % cx.n
                k("s_cbranch_vccnz %s\n%s:" % (lab, back))
                li = L[1] if (pv == "single" or f == 1) else L[0]
                fill[g+1].insert(0, ("valup", "v_add_f32 v%d, v%d, v%d" % (li, li, TS[f]), None))
                redo = list(done[f])
                if pv == "single" and f == 0: redo += done[1]
                if f == 1 and qk == "single": redo += done["n"]
                cx.rare.append((lab, back, par, f, qk, pv, redo))
            else:
                k(t)
                if kind == "lds": lg.issue(tag)
                if kind in ("valup", "value") and tag is not None: done[tag].append(t)
        if g == 4:
            for on, sthr, blocks in ((prepA, 45, [(NEG[0], THR[0], 32)]), (prepB, 46, [(NEG[1], THR[1], 32), (NEG[2], THR[1], 32)])):
                if not on: continue
                cx.n += 1; lab = "K2_prep%d" % cx.n
                k("s_cmp_ge_i32 s44, s%d\ns_cbranch_scc1 %s\n%s_b:" % (sthr, lab, lab))
                body = []
                for neg, thr, dec in blocks:
                    body += prep_list(neg, thr)
                    body.append("v_add_f32 v%d, %s, v%d" % (thr, f32(-dec*BIG), thr))
                cx.ool.append((lab, body))
    k("s_add_u32 s44, s44, 1")
    lg.q = [t[1:] if t[0] == "n" else t for t in lg.q]

def frag_epilogue(k, o, l, g1, soff, T, nb=4):
    t, r = RT, RT+1
    k("v_mov_b32 v%d, v%d\nv_permlane32_swap_b32 v%d, v%d\nv_add_f32 v%d, v%d, v%d\nv_rcp_f32 v%d, v%d\nv_mul_f32 v%d, v%d, v%d\nv_mov_b32 v%d, v%d" % (t, l, l, t, t, t, l, t, t, t, t, g1, r, t))
    for db in range(4):
        for c in range(2):
            b = T + 8*((db*2+c) % nb)
            for n in range(8): k("v_accvgpr_read_b32 v%d, a%d" % (b+n, o + 16*db + 8*c + n))
            for n in range(0, 8, 2): k("v_pk_mul_f32 v[%d:%d], v[%d:%d], v[%d:%d]" % (b+n, b+n+1, b+n, b+n+1, t, r))
            for n in range(4): k("v_cvt_pk_bf16_f32 v%d, v%d, v%d" % (b+n, b+2*n, b+2*n+1))
            k("buffer_store_dwordx4 %s, v%d, s[20:23], s%d offen offset:%d sc1" % (vr(b), VST, soff, c*512))
        if db < 3: k("s_add_u32 s%d, s%d, 8192" % (soff, soff))

def emit_ool(k, cx):
    for lab, body in cx.ool:
        k("%s:" % lab)
        for x in body: k(x)
        k("s_branch %s_b" % lab)
    for r in cx.rare: emit_rare(k, *r)

def attention(k, cx, st, younger, PQ):
    k("v_mov_b32 v%d, 0\nv_mov_b32 v%d, 0" % (L[0], L[1]))
    k("s_lshl_b32 s66, s52, 5\nv_add_u32 v13, s66, v3\nv_lshlrev_b32 v14, 2, v4\nv_sub_u32 v13, v13, v14\nv_cvt_f32_i32 v13, v13\nv_add_f32 v13, 0.5, v13")
    k("v_mul_f32 v%d, %s, v13\nv_mov_b32 v%d, v%d" % (THR[0], f32(BIG), THR[1], THR[0]))
    k("v_and_b32 v13, 15, v3\nv_lshlrev_b32 v13, 4, v13\nv_lshl_add_u32 v13, v4, 8, v13\nv_lshrrev_b32 v14, 4, v3\nv_lshl_add_u32 v13, v14, 10, v13\ns_lshl_b32 s66, s52, 11\nv_add_u32 v%d, s66, v13" % VST)
    k("s_mul_i32 s77, s54, %d\ns_mul_i32 s78, s55, %d\ns_lshl_b32 s66, s53, 15\ns_add_u32 s66, s66, 0x%x" % (160*8192, 160*8192, WS_CTX + 32*8192))
    k("s_add_u32 s69, s77, s66\ns_add_u32 s70, s78, s66")
    k("s_mov_b32 s43, %s\ns_mov_b32 s44, 0\ns_lshl_b32 s47, s54, 2\ns_sub_u32 s45, s47, 2\ns_mov_b32 s46, 30" % f32(65536.0))
    k("v_mov_b32 v%d, v%d\nv_add_u32 v%d, 0x4000, v%d\ns_mov_b32 s42, 0x8000" % (VI[0], VLANE16, VI[1], VLANE16))
    srd(k, 12, 82, 8 << 20); srd(k, 16, 80, 2 << 20)
    k("v_lshlrev_b32 v14, 7, v0\nv_lshlrev_b32 v15, 5, v0\ns_lshl_b32 s75, s2, 15\ns_lshl_b32 s76, s2, 13")
    k("s_lshl_b32 s66, s52, 13\ns_add_u32 s66, s66, 0x20000\nv_add_u32 v13, s66, v%d\ns_lshl_b32 s79, s54, 2\ns_add_u32 s79, s79, 5\ns_mov_b64 s[30:31], 0xff" % VLANE16)
    k("s_waitcnt vmcnt(%d)\ns_barrier" % younger)
    lg = Lgkm()
    for t, tag in k_reads("dual", VI[0]): k(t); lg.issue(tag)
    for n in range(8): k("ds_write_b128 v13, %s offset:%d" % (vr(PQ + 4*n), n*1024)); lg.issue(("PW", n))
    k("v_sub_f32 v%d, 1.0, v%d\nv_sub_f32 v%d, 1.0, v%d" % (G1[0], G1[0], G1[1], G1[1]))
    for ks in range(8):
        w = lg.need({("K", ks)})
        if w: k(w)
        for f in range(2):
            d = vr(S(0, f), 16)
            k("v_mfma_f32_32x32x16_bf16 %s, %s, %s, %s" % (d, vr(KPOOL[ks], 4, "a"), vr((QA, QB)[f] + 4*ks), "0" if ks == 0 else d))
            for n in range(4): k("v_accvgpr_write_b32 a%d, 0" % (64 + (ks*2+f)*4 + n))
    k(lg.need({("PW", 7)}))
    for t, tag in k_reads("dual", VI[1]): k(t); lg.issue(tag)
    dec = "v_add_f32 v%d, %s, v%d" % (THR[0], f32(-32*BIG), THR[0])
    k("s_nop 3\ns_cmp_eq_u32 s54, 0\ns_cbranch_scc1 K2_mask0\nK2_mask0_b:")
    cx.ool.append(("K2_mask0", prep_list(S(0, 0), THR[0]) + [dec]))
    for f in range(2):
        d = RT + 8 + f
        rowmax(k, S(0, f), d, RT + 10 + f)
        for j in range(16): k("v_sub_f32 v%d, v%d, v%d" % (S(0, f)+j, S(0, f)+j, d))
        for nb in ([NEG[0]] if f == 0 else [NEG[1], NEG[2]]):
            for j in range(16): k("v_sub_f32 v%d, 0, v%d" % (nb+j, d))
    k("s_cmp_eq_u32 s54, 0\ns_cbranch_scc1 K2_mask1\nK2_mask1_b:")
    cx.ool.append(("K2_mask1", prep_list(NEG[0], THR[0]) + [dec]))
    for g, _, t in softmax_sched(0, 0):
        if g < 0: k(t)
    st()
    stD = list(lg.q)
    k("s_lshl_b32 s47, s54, 1\ns_add_u32 s47, s47, 1")
    k("K2_loopD:")
    step(cx, lg, 0, "dual", "dual", "dual", prepA=True, vmw=16)
    step(cx, lg, 1, "dual", "dual", "dual", prepA=True, vmw=16, sig=True)
    assert lg.q == stD, (lg.q, stD)
    k("s_sub_u32 s47, s47, 1\ns_cmp_lg_u32 s47, 0\ns_cbranch_scc1 K2_loopD")
    poll = "buffer_load_dword v13, v1, s[20:23], s49 offen sc1"
    step(cx, lg, 0, "dual", "dual", "single", prepB=True, vmw=15,
         extra=[(0, poll + "\nbuffer_load_dword v247, v14, s[12:15], s75 offen\nbuffer_load_dword v247, v15, s[16:19], s76 offen")])
    k("s_mul_i32 s71, s53, %d\ns_add_u32 s71, s71, 0x%x\ns_mul_i32 s72, s52, 3072\ns_add_u32 s72, s72, s71\ns_add_u32 s72, s72, 2048" % (8*12288, WS_KVP))
    k("s_lshr_b32 s66, s52, 1\ns_mul_i32 s66, s66, 6144\ns_add_u32 s71, s71, s66\ns_and_b32 s66, s52, 1\ns_lshl_b32 s66, s66, 10\ns_add_u32 s71, s71, s66")
    k("v_and_b32 v14, 7, v2\nv_mul_u32_u24 v14, 0x3000, v14\nv_add_u32 v14, v14, v%d\nv_and_b32 v15, 15, v2\nv_lshlrev_b32 v15, 2, v15" % VLANE16)
    k("s_waitcnt vmcnt(6)")
    poll_check(k, cx, "K2_spin", 13, poll, 30)
    def kvd(p, tt): return vr(QA + (p*2+tt)*4) if p < 4 else vr(224 + ((p-4)*2+tt)*4, 4, "a")
    ex = []
    for p in range(8):
        for tt in range(2):
            ex.append("buffer_load_dwordx4 %s, v%d, s[20:23], s71 offen offset:%d sc1" % (kvd(p, tt), VLANE16, tt*3072) + ("\ns_add_u32 s71, s71, 12288" if tt else ""))
    ex.append("buffer_load_dwordx4 v[248:251], v14, s[20:23], s72 offen sc1")
    for mt in range(4):
        ex.append("buffer_load_dword v%d, v15, s[20:23], s%d offen offset:%d sc1" % (252+mt, 64 + (mt >> 1), (mt & 1)*64))
    step(cx, lg, 1, "single", "dual", "single", prepB=True, vmw=8+len(ex), extra=list(enumerate(ex)))
    stS = list(lg.q)
    st()
    frag_epilogue(k, OA, L[0], G1[0], 69, RT+8, nb=1)
    k("s_lshl_b32 s66, s52, 13\ns_add_u32 s66, s66, 0x20000\nv_add_u32 v13, s66, v%d\nv_lshrrev_b32 v14, 1, v%d\nv_add_u32 v15, s66, v14\nv_add_u32 v14, 0x20000, v14\nv_add_u32 v5, 0x20000, v%d" % (VLANE16, VLANE16, VLANE16))
    for n in range(8): k("ds_read_b128 %s, v13 offset:%d" % (vr(4*n, 4, "a"), n*1024))
    k("s_waitcnt vmcnt(8)")
    for p in range(1, 8):
        if p >= 4:
            for n in range(8): k("v_accvgpr_read_b32 v%d, a%d" % (RT+8+n, 224 + (p-4)*8 + n))
        src = QA + p*8 if p < 4 else RT+8
        for r in range(0, 8, 2): k("v_pk_add_f32 v[%d:%d], v[%d:%d], v[%d:%d]" % (QA+r, QA+r+1, QA+r, QA+r+1, src+r, src+r+1))
        if p <= 3:
            for r in range(4): k("v_add_f32_dpp v%d, v%d, v%d row_ror:%d row_mask:0xf bank_mask:0xf" % (248+r, 248+r, 248+r, 1 << (p-1)))
    for n in range(4): k("v_cvt_pk_bf16_f32 v%d, v%d, v%d" % (QA+n, QA+2*n, QA+2*n+1))
    k("v_cvt_pk_bf16_f32 v248, v248, v249\nv_cvt_pk_bf16_f32 v249, v250, v251")
    k("s_waitcnt lgkmcnt(0)\nds_write_b128 v13, %s\nds_write_b64 v15, v[248:249] offset:1024" % vr(QA))
    k("s_lshl_b32 s72, s53, 13\ns_lshl_b32 s73, s52, 11\ns_add_u32 s72, s72, s73\ns_add_u32 s72, s72, 0x%x\ns_add_u32 s73, s72, s77\ns_add_u32 s74, s72, s78" % WS_CTX)
    k("s_waitcnt lgkmcnt(0)\ns_barrier")
    AFR = 32
    for sg in range(2):
        for hb in range(2): k("ds_read_b64 a[%d:%d], v14 offset:%d" % (AFR + (4+sg)*4 + 2*hb, AFR + (4+sg)*4 + 2*hb + 1, (2*sg+hb)*8192 + 1024))
    for c in range(2):
        for sg in range(2): k("ds_read_b128 %s, v5 offset:%d" % (vr(AFR + (c*2+sg)*4, 4, "a"), (c + 2*sg)*8192))
    k("s_waitcnt lgkmcnt(0)")
    for c in (2, 0, 1):
        for mt in range(4):
            d = vr(RT + 4*mt) if c == 2 else vr(QA + mt*8 + c*4)
            for sg in range(2):
                k("v_mfma_f32_16x16x32_bf16 %s, %s, %s, %s" % (d, vr(AFR + (c*2+sg)*4, 4, "a"), vr((mt*2+sg)*4, 4, "a"), "0" if sg == 0 else d))
    for mt in range(4):
        dn = RT + 4*mt
        k("v_add_f32 v%d, %s, v%d\nv_rcp_f32 v%d, v%d\nv_mul_f32 v%d, v%d, v%d\nv_mov_b32 v%d, v%d" % (dn, f32(1e-6), dn, dn, dn, dn, dn, 252+mt, dn+1, dn))
    for mt in range(4):
        b = QA + mt*8; dn = RT + 4*mt
        for n in range(0, 8, 2): k("v_pk_mul_f32 v[%d:%d], v[%d:%d], v[%d:%d]" % (b+n, b+n+1, b+n, b+n+1, dn, dn+1))
        for n in range(4): k("v_cvt_pk_bf16_f32 v%d, v%d, v%d" % (b+n, b+2*n, b+2*n+1))
        k("buffer_store_dwordx4 %s, v%d, s[20:23], s%d offen offset:%d sc1" % (vr(b), VLANE16, 73 + (mt >> 1), (mt & 1)*1024))
    st()
    k("s_lshl_b32 s47, s54, 1\ns_sub_u32 s47, 14, s47\ns_cmp_eq_u32 s47, 0\ns_cbranch_scc1 K2_tail")
    k("K2_loopS:")
    step(cx, lg, 0, "single", "single", "single", prepB=True)
    step(cx, lg, 1, "single", "single", "single", prepB=True, sig2=True)
    assert lg.q == stS
    k("s_sub_u32 s47, s47, 1\ns_cmp_lg_u32 s47, 0\ns_cbranch_scc1 K2_loopS")
    k("K2_tail:")
    step(cx, lg, 0, "single", "single", "end")
    k("s_cmp_eq_u32 s54, 7\ns_cbranch_scc1 K2_sig3\nK2_sig3_b:")
    cx.ool.append(("K2_sig3", ["s_waitcnt vmcnt(0)", "s_barrier"] + flag_store(2)))
    k("s_and_b32 s60, s2, 6\ns_bfe_u32 s61, s2, 0x10003\ns_add_u32 s62, s60, s61\ns_sub_u32 s63, 14, s60\ns_add_u32 s63, s63, s61\ns_sub_u32 s66, 15, s63")
    k("s_bitcmp1_b32 s2, 4\ns_cselect_b32 s60, s63, s62\ns_cselect_b32 s62, s66, s62\ns_cselect_b32 s28, 0xff, 0\ns_mov_b32 s29, 0")
    k("s_and_b32 s61, s2, 1\ns_lshl_b32 s61, s61, 3\ns_lshr_b32 s63, s2, 5\ns_add_u32 s61, s61, s63")
    k("s_lshl_b32 s63, s52, 13\ns_lshl_b32 s62, s62, 7\ns_add_u32 s62, s62, s63\nv_min_u32 v1, 7, v2\nv_lshlrev_b32 v1, 10, v1\nv_add_u32 v1, s62, v1\ns_mov_b32 s49, 0x%x" % (WS_FLAG + 2*0x8000))
    step(cx, lg, 1, "none", "single", "end", extra=[(0, poll)])
    k("s_barrier")
    st()
    frag_epilogue(k, OB, L[1], G1[1], 70, S(1, 0))
    k("s_waitcnt vmcnt(8)")
    poll_check(k, cx, "K2_spin2", 13, poll, 30)
    st()
```

```python
from common import *
NR = 5; LA = 4
AR = 64
WFR = 128
VL, VL2, WDV, WRA = 10, 16, 17, 21
def acc(rt, nt): return (rt*4+nt)*4

def vmem_ops(slot):
    ops = []
    for p in range(4):
        t = ("s_add_u32 m0, s46, %d\ns_nop 0\n" % (slot*4096)) if p == 0 else ""
        t += "buffer_load_dwordx4 v%d, s[8:11], s34 offen offset:%d lds" % (WDV+p, p*1024)
        if p == 3: t += "\ns_add_u32 s34, s34, 0x10000"
        ops.append(t)
    for rt in range(8):
        t = "buffer_load_dwordx4 %s, v%d, s[20:23], s35 offen offset:%d sc1" % (vr(AR + slot*32 + rt*4), VL if rt < 4 else VL2, (rt & 3)*1024)
        if rt == 7: t += "\ns_add_u32 s35, s35, 8192"
        ops.append(t)
    return ops
def w_reads(slot, par):
    out = []
    for nt in range(4):
        for hb in range(2):
            b = WFR + par*16 + nt*4 + 2*hb
            out.append(("ds_read_b64_tr_b16 a[%d:%d], v%d offset:%d" % (b, b+1, WRA + (nt >> 1), slot*4096 + hb*1024 + 8*(nt & 1)), ("W", nt)))
    return out

import k2
def outproj(k, cx, st):
    k("s_load_dwordx2 s[26:27], s[0:1], 88")
    k("v_add_u32 v%d, 4096, v%d" % (VL2, VL))
    k("v_lshrrev_b32 v3, 3, v2\nv_and_b32 v4, 7, v2\nv_bfe_u32 v5, v3, 1, 1\nv_lshlrev_b32 v5, 2, v5\nv_xor_b32 v4, v4, v5\nv_lshlrev_b32 v4, 4, v4\nv_lshl_add_u32 v4, v3, 11, v4")
    k("s_lshl_b32 s55, s61, 7\nv_add_u32 v%d, s55, v4" % WDV)
    for p in range(1, 4): k("v_add_u32 v%d, %d, v%d" % (WDV+p, p*15360, WDV))
    k("s_mul_i32 s56, s60, %d\ns_add_u32 s56, s56, 0x%x\ns_lshl_b32 s57, s52, 16\ns_add_u32 s35, s56, s57" % (160*8192, WS_CTX))
    k("s_lshl_b32 s57, s52, 18\ns_add_u32 s40, s56, s57\ns_add_u32 s40, s40, %d" % (32*8192))
    k("s_lshl_b32 s34, s52, 19\ns_lshl_b32 s41, s52, 21\ns_lshl_b32 s46, s52, 15")
    k("s_mov_b32 s8, s16\ns_mov_b32 s9, s17\ns_mov_b32 s10, s18\ns_mov_b32 s11, 0x20000")
    for b in range(2):
        for t in vmem_ops(b): k(t)
    k("v_lshrrev_b32 v3, 5, v2\nv_lshlrev_b32 v3, 11, v3\nv_bfe_u32 v4, v2, 2, 3\nv_lshl_add_u32 v3, v4, 7, v3\nv_add_u32 v3, s46, v3")
    k("v_bfe_u32 v4, v2, 3, 1\nv_lshlrev_b32 v4, 2, v4\nv_and_b32 v5, 3, v2\nv_or_b32 v4, v4, v5\nv_lshl_add_u32 v%d, v4, 4, v3\nv_xor_b32 v4, 4, v4\nv_lshl_add_u32 v%d, v4, 4, v3" % (WRA, WRA+1))
    k("s_waitcnt vmcnt(24)\ns_barrier")
    for x in k2.flag_store(3): k(x)
    for b in range(2, LA):
        for t in vmem_ops(b): k(t)
    k("s_mov_b32 s49, 0x%x" % (WS_FLAG + 3*0x8000))
    k("s_waitcnt vmcnt(45) lgkmcnt(0)")
    srd(k, 24, 26, 2048*1024*2)
    lg = Lgkm()
    for t, tag in w_reads(0, 0): k(t); lg.issue(tag)
    st0 = list(lg.q)
    st()
    poll = "buffer_load_dword v13, v1, s[20:23], s49 offen sc1"
    def block(slot, par, first=False, pre=None, vm=32):
        k("s_waitcnt vmcnt(%d)" % vm)
        if pre: pre()
        fill = [[] for _ in range(32)]
        ops = []
        for t in vmem_ops((slot+LA) % NR): ops += [l for l in t.split("\n") if not l.startswith("s_nop")]
        for n, (t, tag) in enumerate(w_reads((slot+1) % NR, 1-par)): fill[1 + 3*n].append(("lds", t, ("n",)+tag))
        g = 0
        for l in ops:
            if l.startswith("buffer"):
                while fill[g] and (fill[g][0][0] != "raw" or True): g += 1
                fill[g].append(("raw", l, None)); g += 1
                if g % 3 == 1: g += 1
            elif "m0" in l: k(l)
            else: fill[g-1].append(("raw", l, None))
        for g in range(32):
            nt, rt = divmod(g, 8)
            w = lg.need({("W", nt)})
            if w: k(w)
            a = vr(acc(rt, nt), 4, "a")
            k("v_mfma_f32_16x16x32_bf16 %s, %s, %s, %s" % (a, vr(WFR + par*16 + nt*4, 4, "a"), vr(AR + slot*32 + rt*4), "0" if first else a))
            for kind, t, tag in fill[g]:
                k(t)
                if kind == "lds": lg.issue(tag)
        lg.q = [t[1:] if t[0] == "n" else t for t in lg.q]
    def sw():
        k2.poll_check(k, cx, "K3_spin", 13, poll, 28)
        k("s_mov_b32 s8, s12\ns_mov_b32 s9, s13\ns_mov_b32 s10, s14\ns_mov_b32 s35, s40\ns_mov_b32 s34, s41")
    for b in range(10):
        block(b % NR, b & 1, first=(b == 0), pre={2: lambda: k(poll), 4: sw}.get(b), vm={0: 33, 3: 33, 4: 24}.get(b, 32))
    assert lg.q == st0
    k("s_mov_b32 s45, 1")
    k("K3_loop:")
    for b in range(10):
        block(b % NR, b & 1, pre=(lambda: k("s_cmp_eq_u32 s45, 3\ns_cselect_b32 s35, 0x%x, s35\ns_cselect_b32 s34, 0x%x, s34" % (BIGOFF, BIGOFF))) if b == 6 else None)
    assert lg.q == st0
    k("s_add_u32 s45, s45, 1\ns_cmp_lt_u32 s45, 4\ns_cbranch_scc1 K3_loop")
    st()
    k("s_waitcnt vmcnt(0) lgkmcnt(0)")
    k("v_add_u32 v3, s46, v%d" % VL)
    for t in range(32): k("ds_write_b128 v3, %s offset:%d" % (vr(4*t, 4, "a"), t*1024))
    k("s_lshl_b32 s55, s52, 13\nv_add_u32 v3, s55, v%d\nv_add_u32 v4, 0x10000, v3" % VL)
    k("s_waitcnt lgkmcnt(0)\ns_barrier")
    st()
    for w in range(4):
        for t in range(8): k("ds_read_b128 %s, v%d offset:%d" % (vr(64 + (w*8+t)*4), 3 + (w >> 1), (w & 1)*32768 + t*1024))
    k("s_lshl_b32 s55, s60, 18\ns_lshl_b32 s56, s52, 16\ns_add_u32 s55, s55, s56\ns_lshl_b32 s56, s61, 7\ns_add_u32 s55, s55, s56\ns_add_u32 s56, s55, 0x8000")
    k("v_and_b32 v5, 15, v2\nv_lshlrev_b32 v5, 11, v5\nv_lshrrev_b32 v13, 4, v2\nv_lshl_add_u32 v5, v13, 4, v5")
    for w in range(1, 4):
        k("s_waitcnt lgkmcnt(%d)" % min(15, 8*(3-w)))
        for r in range(0, 32, 2): k("v_pk_add_f32 v[%d:%d], v[%d:%d], v[%d:%d]" % (64+r, 65+r, 64+r, 65+r, 64+32*w+r, 65+32*w+r))
    for q in range(4):
        b = 64 + 8*q
        for n in range(4): k("v_cvt_pk_bf16_f32 v%d, v%d, v%d" % (b+n, b+2*n, b+2*n+1))
        k("buffer_store_dwordx4 %s, v5, s[24:27], s%d offen offset:%d" % (vr(b), 55 + (q >> 1), (q & 1)*64))
    st()
    if st.on: k("s_waitcnt vmcnt(0)")
    st()
```

```python
import sys
from common import *
import f12
KN = "gated_mix__linear_kernel_hedgehog__compressed_kv_cla__prompt_kernel"
HDR = open("gated_mix__linear_kernel_hedgehog__compressed_kv_cla__prompt.s.ref").read().split("; Override launch geometry")[0]
def build(path, stamps=False, **kw):
    a, r1 = f12.gen(name=KN, stamps=stamps, **kw)
    out = [HDR.rstrip("\n"), "; @launch grid=(256,1,1) block=(256,1,1) lds=163840", '.amdgcn_target "amdgcn-amd-amdhsa--gfx950"', a.text(), a.desc()]
    open(path, "w").write("\n".join(out))
    return r1
if __name__ == "__main__":
    r = build("one.s"); build("one_st.s", stamps=True)
    build("v_a.s", True, fine="op"); build("v_b.s", True, fine="op", att=dict(poll0=False))
    import collections
    print(collections.Counter(x[0].split()[0] for x in r))
```

```python
from common import *
from k1 import alloc, micro, merge
import k2, k3g

XD, WD, XD2, WD2, XA, WA, WB, WA2, WB2 = 8, 16, 24, 32, 40, 42, 46, 48, 52
VPF1, VPF2, VK, VV, VFLAG, VPOLL = 54, 55, 56, 57, 58, 59
XF, WF = 64, 96
WPHI = 224
NWB = 8
def acc1(nt, mt): return ("v", 64 + (nt*4+mt)*4) if nt < 12 else ("a", ((nt-12)*4+mt)*4)
P2V = {8: 80, 9: 112, 10: 144, 11: 176}
def acc2(nt, mt):
    if nt in P2V: return ("v", P2V[nt] + 4*mt)
    n = nt if nt < 8 else nt - 4
    return ("a", n*16 + 4*mt) if n < 4 else ("a", 128 + (n-4)*16 + 4*mt)
def rs(t): return vr(t[1], 4, t[0])

def w_read(part, q, hb, slot):
    NT = 16 if part == 1 else 14
    ks, nt = divmod(q, NT)
    so = 32768 if slot == 1 else 0
    if part == 1 or nt < 8:
        return (WA2 if slot == 2 else WA) + (nt & 3), so + (nt >> 2)*8192 + ks*4096 + hb*512
    cg, seg = divmod(nt-8, 2)
    return (WB2 if slot == 2 else WB) + seg, so + ks*8192 + cg*1024 + hb*256

NT_W = ['']
NT_X = ['']
def dma_ops(j):
    part = 1 if j < 8 else 2; kk = j if j < 8 else j - 8
    slot = 0x10000 + (j % 3)*0x8000
    srdA, srdB, srdX = (12, 12, 8) if part == 1 else (16, 24, 28)
    xd, wd = (XD, WD) if part == 1 else (XD2, WD2)
    offA, offB = (41, 42) if part == 1 else (43, 44)
    W = []
    nb = 4 if part == 1 else 3
    for n in range(4 + nb):
        t = ""
        if n == 0: t += "s_add_u32 m0, s%d, 0x%x\ns_mov_b32 s34, 0x%x\n" % (offA, slot, kk*0x80000)
        if n == 4:
            t += "s_add_u32 m0, s%d, 0x%x\n" % (offB, slot)
            t += "s_nop 0\n" if part == 1 else "s_mov_b32 s35, 0x%x\n" % (kk*0x60000)
        s = srdA if n < 4 else srdB
        t += "buffer_load_dwordx4 v%d, s[%d:%d], s%d offen offset:%d %slds" % (wd+n, s, s+3, 34 if (n < 4 or part == 1) else 35, (n % 4)*1024, NT_W[0])
        W.append(t)
    X = []
    for n in range(8):
        t = ""
        if n % 4 == 0: t += "s_add_u32 m0, s46, %d\n" % ((j & 1)*8192 + n*1024) + ("s_movk_i32 s33, %d\n" % (kk*128) if n == 0 else "s_nop 0\n")
        t += "buffer_load_dwordx4 v%d, s[%d:%d], s33 offen offset:%d %slds" % (xd+n, srdX, srdX+3, (n % 4)*1024, NT_X[0])
        X.append(t)
    return W, X
def nvm(texts): return sum(l.startswith(("buffer", "global")) for t in texts for l in t.split("\n"))

def pstep(k, lg, j, fbase, head=(), after_bar=None, vm_extra=0, valu=(), spread=(), hgap=4, late=(), lategap=4):
    part = 1 if j < 8 else 2; last = j == 23
    npart = 1 if j+1 < 8 else 2
    NT = 16 if part == 1 else 14
    NF = 2*NT; NG = 4*NF; D = 6; par = j & 1
    accf = acc1 if part == 1 else acc2
    first = j in (0, 8)
    def wrd(p, q, slot, fb, tagpre, e, dl):
        out = []
        buf = WF + 4*((fb+q) % NWB)
        for hb in range(2):
            a, imm = w_read(p, q, hb, slot)
            out.append(("lds", "ds_read_b64_tr_b16 a[%d:%d], v%d offset:%d" % (buf+2*hb, buf+2*hb+1, a, imm), (tagpre, "W", q), e + 2*hb, dl))
        return out
    def xrd(ks, mt, slot, tagpre, e, dl):
        b = XF + 16*ks + 4*mt
        return ("lds", "ds_read_b128 a[%d:%d], v%d offset:%d" % (b, b+3, XA+ks, slot*8192 + mt*2048), (tagpre, "X", ks, mt), e, dl)
    bar = 4*(NF-4)
    sW = []
    for q in range(NF - D): sW += wrd(part, q+D, j % 3, fbase, "c", 4*q, 4*q+5)
    sX = [xrd(1, mt, par, "c", 4*(2+mt)+1, 4*NT-12) for mt in range(4)]
    sD = []; nv = 0
    h1 = 1 + hgap*len(head)
    if head: sD += micro(list(head), 1, h1, bar-1); nv += nvm(head)
    if j + 2 < 24:
        wd, xd = dma_ops(j+2)
        sD += micro(wd, max(3, h1), max(4*NT-2, h1+2*len(wd)), bar-1) + micro(xd, max(4*NT+3, h1+2*len(wd)), bar-4-lategap*len(late), bar-1); nv += nvm(wd) + nvm(xd)
    if late: sD += micro(list(late), bar-2-lategap*len(late), bar-2, bar-1); nv += nvm(late)
    reserve = {g: 1 for g in range(7, NG, 8)}
    if not last:
        nxt = wrd(npart, 0, (j+1) % 3, fbase+NF, "n", bar, NG-1) + [xrd(0, mt, 1-par, "n", bar, NG-1) for mt in range(4)]
        for q in range(1, D): nxt += wrd(npart, q, (j+1) % 3, fbase+NF, "n", bar + (0 if q < 4 else 4*(q-3)), NG-1)
        nxt = [(x[0], x[1], x[2], max(bar, x[3] - (2 if x[3] > bar and x[3] % 4 == 2 else 0)), x[4]) for x in nxt]
        sW += nxt
        reserve[bar-1] = 2
    sV = micro(list(valu), 2, NG-2, NG-1) if valu else []
    sS = micro(list(spread), 5, bar-3, bar-1) if spread else []
    nv += nvm(valu) + nvm(spread)
    fill = alloc(NG, [sW, sX, sD, sS, sV], reserve)
    for g in range(NG):
        q, mt = divmod(g, 4); ks, nt = divmod(q, NT)
        if g == bar and not last:
            k("s_waitcnt lgkmcnt(0) vmcnt(%d)\ns_barrier" % (nv + vm_extra)); lg.drain()
            if after_bar: after_bar()
        if g % 8 == 0:
            nd = {("c", "W", q), ("c", "W", q+1)}
            for qq in (q, q+1):
                if qq % NT == 0: nd |= {("c", "X", qq // NT, m) for m in range(4)}
            w = lg.need(nd)
            if w: k(w)
        assert lg.need({("c", "W", q), ("c", "X", ks, mt)}) is None
        wf = vr(WF + 4*((fbase+q) % NWB), 4, "a"); xf = vr(XF + 16*ks + 4*mt, 4, "a")
        vtype = (part == 1 and nt >= 8) or (part == 2 and nt >= 12)
        A, B = (xf, wf) if vtype else (wf, xf)
        C = "0" if (first and ks == 0) else rs(accf(nt, mt))
        k("v_mfma_f32_16x16x32_bf16 %s, %s, %s, %s" % (rs(accf(nt, mt)), A, B, C))
        for f in fill[g]:
            k(f[1])
            if f[0] == "lds": lg.issue(f[2])
    lg.q = [("c",)+t[1:] for t in lg.q]
    return fbase + NF

def pack(d, a, b):
    return ["v_cvt_pk_bf16_f32 v%d, v%d, v%d" % (d, a, a+1), "v_cvt_pk_bf16_f32 v%d, v%d, v%d" % (d+1, a+2, a+3),
            "v_cvt_pk_bf16_f32 v%d, v%d, v%d" % (d+2, b, b+1), "v_cvt_pk_bf16_f32 v%d, v%d, v%d" % (d+3, b+2, b+3)]

def red4(a, b, c, d, t, op):
    return ["v_permlane16_swap_b32 v%d, v%d" % (a, b), "v_permlane16_swap_b32 v%d, v%d" % (c, d),
            "%s v%d, v%d, v%d" % (op, a, a, b), "%s v%d, v%d, v%d" % (op, c, c, d),
            "v_permlane32_swap_b32 v%d, v%d" % (a, c), "%s v%d, v%d, v%d" % (op, a, a, c),
            "v_mov_b32 v%d, v%d" % (c, a), "v_permlane32_swap_b32 v%d, v%d" % (a, c),
            "v_mov_b32 v%d, v%d" % (b, a), "v_mov_b32 v%d, v%d" % (d, c),
            "v_permlane16_swap_b32 v%d, v%d" % (a, b), "v_permlane16_swap_b32 v%d, v%d" % (c, d)]

def softmax2(P0, P1, T):
    st = [T, T+1, T+2, T+3]; E = [T+4, T+12]; L = []
    def both(fn):
        return merge(fn(P0, E[0], st[0], st[1]), fn(P1, E[1], st[2], st[3]))
    L += both(lambda P, e, mx, nm: ["v_max3_f32 v%d, v%d, v%d, v%d" % (mx, P, P+1, P+2), "v_max3_f32 v%d, -v%d, -v%d, -v%d" % (nm, P, P+1, P+2),
                                    "v_max3_f32 v%d, v%d, v%d, v%d" % (mx, mx, P+3, P+4), "v_max3_f32 v%d, v%d, -v%d, -v%d" % (nm, nm, P+3, P+4),
                                    "v_max3_f32 v%d, v%d, v%d, v%d" % (mx, mx, P+5, P+6), "v_max3_f32 v%d, v%d, -v%d, -v%d" % (nm, nm, P+5, P+6),
                                    "v_max_f32 v%d, v%d, v%d" % (mx, mx, P+7), "v_max_f32_e64 v%d, v%d, -v%d" % (nm, nm, P+7)])
    L += red4(*st, None, "v_max_f32")
    L += ["v_pk_mul_f32 v[%d:%d], v[%d:%d], s[50:51]" % (T, T+1, T, T+1), "v_pk_mul_f32 v[%d:%d], v[%d:%d], s[50:51]" % (T+2, T+3, T+2, T+3)]
    def fm(P, e, mx, nm):
        o = []
        for j in range(0, 8, 2):
            o.append("v_pk_fma_f32 v[%d:%d], v[%d:%d], s[50:51], v[%d:%d] op_sel:[0,0,1] op_sel_hi:[1,1,1] neg_lo:[1,0,1] neg_hi:[1,0,1]" % (e+j, e+j+1, P+j, P+j+1, mx, nm))
            o.append("v_pk_fma_f32 v[%d:%d], v[%d:%d], s[50:51], v[%d:%d] op_sel_hi:[1,1,0] neg_lo:[0,0,1] neg_hi:[0,0,1]" % (P+j, P+j+1, P+j, P+j+1, mx, nm))
        return o
    L += both(fm)
    L += both(lambda P, e, mx, nm: [x for j in range(8) for x in ("v_exp_f32 v%d, v%d" % (e+j, e+j), "v_exp_f32 v%d, v%d" % (P+j, P+j))])
    S0, S1 = T+20, T+24
    def sm(P, e, mx, nm):
        s = S0 if P == P0 else S1
        o = ["v_pk_add_f32 v[%d:%d], v[%d:%d], v[%d:%d]" % (s, s+1, P, P+1, P+2, P+3), "v_pk_add_f32 v[%d:%d], v[%d:%d], v[%d:%d]" % (s+2, s+3, e, e+1, e+2, e+3)]
        for j in (4, 6):
            o += ["v_pk_add_f32 v[%d:%d], v[%d:%d], v[%d:%d]" % (s, s+1, s, s+1, P+j, P+j+1), "v_pk_add_f32 v[%d:%d], v[%d:%d], v[%d:%d]" % (s+2, s+3, s+2, s+3, e+j, e+j+1)]
        o += ["v_add_f32 v%d, v%d, v%d" % (mx, s, s+1), "v_add_f32 v%d, v%d, v%d" % (nm, s+2, s+3)]
        return o
    L += both(sm)
    L += red4(*st, None, "v_add_f32")
    L += ["v_rcp_f32 v%d, v%d" % (x, x) for x in st]
    def nr(P, e, mx, nm):
        o = []
        for j in range(0, 8, 2):
            o.append("v_pk_mul_f32 v[%d:%d], v[%d:%d], v[%d:%d] op_sel_hi:[1,0]" % (P+j, P+j+1, P+j, P+j+1, mx, nm))
            o.append("v_pk_mul_f32 v[%d:%d], v[%d:%d], v[%d:%d] op_sel:[0,1] op_sel_hi:[1,1]" % (e+j, e+j+1, e+j, e+j+1, mx, nm))
        return o + pack(P, P, P+4) + pack(P+4, e, e+4)
    L += both(nr)
    return L

def spin(k, cx, name, vres, vexp, reload_text):
    k("v_cmp_gt_u32 vcc, v%d, v%d\ns_cbranch_vccnz %s\n%s_b:" % (vexp, vres, name, name))
    body = ["s_mov_b32 s88, 0", "%s_l:" % name, "s_sleep 4", reload_text, "s_waitcnt vmcnt(0)"]
    return body

def gen(name="f12_kernel", stamps=False, codebytes=98304, fine=None, stsc="sc1", nst=3, pf1=False, pfs=(2,3,4,4,5,6,7,7), coop=0, coopfirst=True, latepf=True, latest=False, cpf=True, nfirst=2, ntw=False, ntx=False, pfnt=False):
    NT_W[0] = "nt " if ntw else ""; NT_X[0] = "nt " if ntx else ""
    k = K(name, vgpr=512, accum=256, sgpr=96)
    cx = k2.Ctx(k)
    k("s_cmp_ge_u32 s2, 256\ns_cbranch_scc1 F_end")
    st = Stamps(k, stamps, 6); st.fine = fine; k3g.NFIRST[0] = nfirst
    if stamps: k("v_mov_b32 v7, 0")
    st()
    k("s_load_dwordx4 s[4:7], s[0:1], 40")
    k("s_load_dwordx4 s[60:63], s[0:1], 56")
    k("s_load_dwordx2 s[72:73], s[0:1], 0")
    k("s_load_dwordx4 s[76:79], s[0:1], 8")
    k("s_load_dwordx2 s[64:65], s[0:1], 80")
    k("s_load_dwordx4 s[68:71], s[0:1], 96")
    k("s_load_dwordx2 s[80:81], s[0:1], 24\ns_load_dwordx2 s[82:83], s[0:1], 72")
    k("s_getpc_b64 s[90:91]\nF_pc:\ns_lshr_b32 s45, s2, 3")
    for x in k2.codepf("F_pc", 4, 61, 118): k(x)
    k("v_lshrrev_b32 v1, 6, v0\nv_and_b32 v2, 63, v0")
    k("v_readfirstlane_b32 s52, v1")
    k("s_and_b32 s53, s2, 31\ns_lshr_b32 s54, s2, 5\ns_sub_u32 s55, 15, s54")
    k("v_lshrrev_b32 v3, 3, v2\nv_and_b32 v4, 7, v2")
    k("s_lshl_b32 s56, s54, 2\ns_add_u32 s56, s56, s52\ns_lshl_b32 s57, s55, 2\ns_add_u32 s57, s57, s52")
    k("v_lshrrev_b32 v60, 1, v3\nv_xor_b32 v60, v60, v4\nv_xor_b32 v117, 4, v60\nv_lshlrev_b32 v60, 4, v60\nv_lshlrev_b32 v117, 4, v117")
    k("v_and_b32 v62, 2, v3\nv_xor_b32 v62, v62, v4\nv_xor_b32 v63, 4, v62\nv_lshlrev_b32 v62, 4, v62\nv_lshlrev_b32 v63, 4, v63")
    k("v_lshl_add_u32 v62, v3, 13, v62\nv_lshl_add_u32 v63, v3, 13, v63")
    def xoffs(dst, sh, perm):
        k("v_lshl_add_u32 v4, v3, %d, v60\nv_lshl_add_u32 v5, v3, %d, v117" % (sh, sh))
        k("s_lshl_b32 s58, s56, %d\ns_lshl_b32 s59, s57, %d" % (sh+5, sh+5))
        for p in range(8):
            k("s_add_u32 s66, s%d, %d\nv_add_u32 v%d, s66, v%d" % (58 if p < 4 else 59, (8*perm[p & 3] << sh) - (p & 3)*1024, dst+p, 4 + (p & 1)))
    xoffs(XD, 10, [0, 2, 1, 3])
    k("s_lshl_b32 s58, s53, 8\ns_and_b32 s59, s52, 1\ns_lshl_b32 s66, s59, 7\ns_add_u32 s66, s66, s58")
    for kg in range(8):
        k("s_add_u32 s67, s66, %d\nv_add_u32 v%d, s67, v%d" % (kg*65536 - (kg & 3)*1024, WD+kg, 62 + (kg & 1)))
    k("s_lshl_b32 s46, s52, 14\ns_lshl_b32 s41, s52, 13\ns_add_u32 s42, s41, 4096\ns_lshl_b32 s43, s52, 12\ns_add_u32 s44, s43, 16384")
    k("s_waitcnt lgkmcnt(0)")
    if fine == "pro": st()
    srd(k, 8, 4, 2048*512*2)
    k("s_cmp_lt_u32 s52, 2\ns_cselect_b32 s12, s60, s62\ns_cselect_b32 s13, s61, s63\ns_and_b32 s13, s13, 0xffff\ns_mov_b32 s14, 0x400000\ns_mov_b32 s15, 0x20000")
    def coop_pf():
        if not coop: return
        k("s_lshr_b32 s58, s2, 3\ns_lshl_b32 s59, s58, 2\ns_add_u32 s59, s59, s52\ns_lshl_b32 s59, s59, 14")
        k("v_lshrrev_b32 v119, 2, v2\nv_lshlrev_b32 v119, 10, v119\nv_and_b32 v120, 3, v2\nv_lshl_add_u32 v119, v120, 7, v119")
        k("buffer_load_dword v118, v119, s[8:11], s59 offen")
        if coop == 8: k("buffer_load_dword v118, v119, s[8:11], s59 offen offset:512")
        k("s_lshl_b32 s58, s58, 1\ns_and_b32 s59, s52, 1\ns_add_u32 s58, s58, s59\ns_mul_i32 s58, s58, %d\ns_and_b32 s59, s2, 7\ns_lshl_b32 s59, s59, 8\ns_add_u32 s58, s58, s59" % (coop*8192))
        k("v_lshrrev_b32 v119, 3, v2\nv_lshlrev_b32 v119, 13, v119\nv_bfe_u32 v120, v2, 1, 2\nv_lshl_add_u32 v119, v120, 11, v119\nv_and_b32 v120, 1, v2\nv_lshl_add_u32 v119, v120, 7, v119")
        if coop == 4: k("v_cmp_gt_u32 vcc, 32, v2\nv_mov_b32 v120, 0x%x\ns_nop 0\nv_cndmask_b32 v119, v120, v119, vcc" % BIGOFF)
        k("buffer_load_dword v118, v119, s[12:15], s58 offen")
    if coopfirst: coop_pf()
    wd, xd = dma_ops(0)
    for t in wd + xd: k(t)
    if not coopfirst: coop_pf()
    if fine == "pro": st()
    srd(k, 16, 6, 8 << 20); srd(k, 24, 76, 6 << 20); srd(k, 28, 72, 4 << 20); srd(k, 20, 70, WS_BYTES); srd(k, 36, 68, 256)
    srd(k, 60, 64, 2048); srd(k, 72, 78, 32*32*32*2)
    k("s_lshl_b32 s58, s53, 3\ns_lshl_b32 s59, s52, 1\ns_add_u32 s58, s58, s59\ns_cmp_lt_u32 s58, 128\ns_cselect_b32 s59, s54, s55\ns_lshl_b32 s59, s59, 7\ns_and_b32 s58, s58, 127\ns_add_u32 s58, s58, s59")
    k("s_lshl_b32 s76, s58, 2\ns_add_u32 s76, s76, 0x%x\ns_lshl_b32 s58, s58, 11\ns_add_u32 s59, s58, 2048" % WS_G)
    k("s_mov_b32 s77, s58\ns_mov_b32 s78, s59")
    gload = ["buffer_load_dwordx4 a[128:131], v61, s[28:31], s77 offen", "buffer_load_dwordx4 a[132:135], v61, s[28:31], s77 offen offset:16",
             "buffer_load_dwordx4 a[136:139], v61, s[28:31], s78 offen", "buffer_load_dwordx4 a[140:143], v61, s[28:31], s78 offen offset:16",
             "buffer_load_dwordx4 a[144:147], v61, s[60:63], 0 offen", "buffer_load_dwordx4 a[148:151], v61, s[60:63], 0 offen offset:16"]
    J, G_, R_, C_ = 104, 105, 106, 107
    k("v_and_b32 v%d, 15, v2\nv_lshrrev_b32 v%d, 4, v2\nv_bfe_u32 v%d, v2, 2, 2\nv_and_b32 v%d, 3, v2" % (J, G_, R_, C_))
    k("v_lshrrev_b32 v108, 1, v%d\nv_and_b32 v109, 1, v%d" % (G_, G_))
    k("v_lshlrev_b32 v110, 10, v108\nv_lshl_add_u32 v110, v109, 8, v110\nv_lshl_add_u32 v110, v%d, 1, v110\ns_lshl_b32 s79, s53, 11" % J)
    pload = ["buffer_load_ushort a%d, v59, s[72:75], s79 offen offset:%d" % (152+ft*8+s_, (8*(s_ >> 2) + (s_ & 3))*64 + ft*32) for ft in range(2) for s_ in range(8)]
    xoffs(XD2, 11, [0, 1, 2, 3])
    k("s_lshl_b32 s58, s53, 8\ns_and_b32 s59, s52, 1\ns_lshr_b32 s66, s52, 1\ns_lshl_b32 s66, s66, 7\ns_add_u32 s66, s66, s58\ns_lshl_b32 s59, s59, 18\ns_add_u32 s66, s66, s59")
    for p in range(4):
        k("s_add_u32 s67, s66, %d\nv_add_u32 v%d, s67, v%d" % (p*65536 - p*1024, WD2+p, 62 + (p & 1)))
    k("v_lshrrev_b32 v111, 2, v2\nv_lshrrev_b32 v112, 5, v2\nv_xor_b32 v112, v112, v%d\nv_lshlrev_b32 v112, 4, v112" % C_)
    k("s_movk_i32 s67, 6144\nv_mad_u32_u24 v111, v111, s67, v112")
    k("s_mul_i32 s66, s52, %d\ns_lshl_b32 s67, s53, 6\ns_add_u32 s66, s66, s67" % (16*6144))
    for cg in range(3):
        k("s_add_u32 s67, s66, %d\nv_add_u32 v%d, s67, v111" % (cg*1024, WD2+4+cg))
    k("v_lshrrev_b32 v111, 1, v%d\nv_xor_b32 v111, v111, v%d\nv_xor_b32 v112, 4, v111\nv_lshlrev_b32 v113, 7, v%d\nv_add_u32 v113, s46, v113" % (J, G_, J))
    k("v_lshl_add_u32 v%d, v111, 4, v113\nv_lshl_add_u32 v%d, v112, 4, v113" % (XA, XA+1))
    k("v_lshrrev_b32 v111, 1, v%d\nv_lshl_or_b32 v111, v109, 1, v111" % R_)
    k("v_lshlrev_b32 v113, 10, v%d\nv_lshl_add_u32 v113, v%d, 7, v113\nv_lshl_add_u32 v113, v%d, 3, v113\nv_add_u32 v113, 0x10000, v113" % (G_, R_, C_))
    for seg in range(4):
        k("v_xor_b32 v112, %d, v111\nv_lshl_add_u32 v%d, v112, 5, v113\nv_add_u32 v%d, 0x10000, v%d" % (seg, WA+seg, WA2+seg, WA+seg))
    k("v_lshlrev_b32 v113, 12, v108\nv_lshl_add_u32 v113, v109, 9, v113\nv_lshl_add_u32 v113, v%d, 6, v113" % R_)
    k("v_and_b32 v111, 1, v%d\nv_lshl_add_u32 v113, v111, 3, v113\nv_add_u32 v113, 0x14000, v113\nv_and_b32 v111, 2, v%d\nv_xor_b32 v111, v111, v109" % (C_, C_))
    k("v_lshl_add_u32 v%d, v111, 4, v113\nv_xor_b32 v111, 1, v111\nv_lshl_add_u32 v%d, v111, 4, v113" % (WB, WB+1))
    k("v_add_u32 v%d, 0x10000, v%d\nv_add_u32 v%d, 0x10000, v%d" % (WB2, WB, WB2+1, WB+1))
    k("s_lshl_b32 s58, s2, 2\ns_add_u32 s58, s58, s52\ns_lshl_b32 s59, s58, 10\ns_mul_i32 s58, s58, 768\nv_lshlrev_b32 v111, 7, v2\nv_mov_b32 v112, 0x%x" % BIGOFF)
    k("v_add_u32 v%d, s59, v111\nv_add_u32 v%d, s58, v111\nv_cmp_gt_u32 vcc, 8, v2\nv_cmp_gt_u32 s[66:67], 6, v2" % (VPF1, VPF2))
    k("v_cndmask_b32 v%d, v112, v%d, vcc\nv_cndmask_b32 v%d, v112, v%d, s[66:67]" % (VPF1, VPF1, VPF2, VPF2))
    k("v_lshlrev_b32 v111, 7, v2\ns_lshl_b32 s58, s53, 10\nv_add_u32 v1, s58, v111\nv_subrev_u32 v111, 8, v2\nv_lshlrev_b32 v111, 10, v111\ns_lshl_b32 s59, s54, 7\nv_add_u32 v111, s59, v111\nv_add_u32 v111, 0x20000, v111")
    k("v_cmp_gt_u32 vcc, 8, v2\ns_add_u32 s58, s58, s59\ns_cmp_eq_u32 s52, 0\nv_cndmask_b32 v1, v111, v1, vcc\ns_cselect_b32 s58, s58, 0x%x\ns_cselect_b32 s66, 0, 0x%x" % (BIGOFF, BIGOFF))
    k("v_cmp_gt_u32 vcc, 40, v2\nv_mov_b32 v%d, v112\nv_mov_b32 v113, v112\nv_cndmask_b32 v1, v112, v1, vcc\nv_writelane_b32 v%d, s58, 0\nv_writelane_b32 v113, s66, 0" % (VFLAG, VFLAG))
    k("s_memrealtime s[58:59]\nv_mov_b32 v61, v113\nv_mov_b32 v63, 0\ns_waitcnt lgkmcnt(0)\ns_or_b32 s89, s58, 1\nv_mov_b32 v62, s89")
    nonce = "buffer_atomic_cmpswap v[62:63], v61, s[36:39], 0 offen sc1"
    k("s_mov_b32 s50, %s\ns_mov_b32 s51, s50" % f32(LOG2E))
    k("v_and_b32 v111, 7, v%d\nv_lshlrev_b32 v%d, 4, v111\nv_lshrrev_b32 v111, 3, v%d\nv_lshl_add_u32 v%d, v111, 8, v%d\nv_lshl_add_u32 v%d, v108, 9, v%d\nv_lshl_add_u32 v%d, v109, 10, v%d" % (J, VK, J, VK, VK, VK, VK, VK, VK))
    k("v_lshlrev_b32 v%d, 4, v%d\nv_lshl_add_u32 v%d, v109, 9, v%d\nv_lshl_add_u32 v%d, v108, 12, v%d" % (VV, J, VV, VV, VV, VV))
    k("s_lshl_b32 s40, s53, 20\ns_lshl_b32 s84, s56, 14\ns_add_u32 s84, s84, s40\ns_lshl_b32 s85, s57, 14\ns_add_u32 s85, s85, s40")
    k("s_add_u32 s86, s84, 4096\ns_add_u32 s87, s85, 4096\ns_add_u32 s47, s84, 8192\ns_add_u32 s48, s85, 8192")
    k("v_cmp_eq_u32 vcc, 63, v2\nv_mov_b32 v3, 0\ns_nop 0\nv_cndmask_b32 v3, v112, v3, vcc")
    k("s_lshl_b32 s58, s2, 1\ns_and_b32 s59, s52, 1\ns_add_u32 s58, s58, s59\ns_mul_i32 s58, s58, 6144\ns_add_u32 s58, s58, 0x100000")
    k("v_lshlrev_b32 v111, 7, v2\nv_add_u32 v4, s58, v111\nv_cmp_gt_u32 vcc, 48, v2\ns_lshl_b32 s58, s2, 13\nv_lshlrev_b32 v5, 5, v0\nv_cndmask_b32 v4, v112, v4, vcc\nv_add_u32 v5, s58, v5")
    p1pf = ["buffer_load_dword v60, v4, s[12:15], 0 offen", "buffer_load_dword v60, v5, s[8:11], 0 offen"]
    k("v_mov_b32 v%d, v110\ns_mov_b32 s32, 0x%x\ns_mov_b32 s49, 0x%x" % (VPOLL, WS_FLAG, WS_FLAG + 0x8000))
    if fine == "pro": st()
    k("s_waitcnt vmcnt(0)\ns_barrier")
    lg = Lgkm()
    for q in range(6):
        for hb in range(2):
            a, imm = w_read(1, q, hb, 0)
            k("ds_read_b64_tr_b16 a[%d:%d], v%d offset:%d" % (WF+4*q+2*hb, WF+4*q+2*hb+1, a, imm)); lg.issue(("c", "W", q))
        if q == 0:
            for mt in range(4):
                k("ds_read_b128 a[%d:%d], v%d offset:%d" % (XF+4*mt, XF+4*mt+3, XA, mt*2048)); lg.issue(("c", "X", 0, mt))
    gate = []
    for n in range(8):
        gate += ["v_accvgpr_read_b32 v61, a%d" % (152+2*n), "v_accvgpr_read_b32 v62, a%d" % (153+2*n), "v_lshl_or_b32 v61, v62, 16, v61", "v_accvgpr_write_b32 a%d, v61" % (WPHI+n)]
    gate += ["v_mov_b32 v4, 0", "v_mov_b32 v5, 0"]
    for n in range(8):
        gate += ["v_accvgpr_read_b32 v61, a%d" % (144+n), "v_accvgpr_read_b32 v62, a%d" % (128+n), "v_accvgpr_read_b32 v63, a%d" % (136+n),
                 "v_dot2_f32_bf16 v4, v62, v61, v4", "v_dot2_f32_bf16 v5, v63, v61, v5"]
    gate2 = []
    for sh in ("row_shr:1", "row_shr:2", "row_shr:4", "row_shr:8"):
        gate2 += ["v_add_f32_dpp v%d, v%d, v%d %s row_mask:0xf bank_mask:0xf bound_ctrl:0" % (r, r, r, sh) for r in (4, 5)]
    gate2 += ["v_add_f32_dpp v%d, v%d, v%d row_bcast:15 row_mask:0xa bank_mask:0xf" % (r, r, r) for r in (4, 5)]
    gate2 += ["v_add_f32_dpp v%d, v%d, v%d row_bcast:31 row_mask:0xc bank_mask:0xf" % (r, r, r) for r in (4, 5)]
    gate2 += ["v_mul_f32 v4, s50, v4", "v_mul_f32 v5, s50, v5", "v_exp_f32 v4, -v4", "v_exp_f32 v5, -v5", "v_add_f32 v4, 1.0, v4", "v_add_f32 v5, 1.0, v5", "v_rcp_f32 v4, v4", "v_rcp_f32 v5, v5"]
    st()
    fb = 0; prevlate = 0
    stores = []
    for j in range(24):
        head = []; ab = None; spread = []; valu = []; hgap = 4; vx = 0
        k("F_step%d:" % j)
        if j == 0:
            wd, xd = dma_ops(1)
            head = wd + xd + (p1pf if pf1 else []) + [nonce]; hgap = 2
            vx = -(16)
        pfl = []
        for r in range(8):
            if pfs[r] == j:
                pfl += ["s_mov_b32 s66, 0x%x\nbuffer_load_dword v60, v%d, s[16:19], s66 offen" % (r << 20, VPF1), "s_mov_b32 s67, 0x%x\nbuffer_load_dword v60, v%d, s[24:27], s67 offen" % (r*786432, VPF2)]
        late = []
        if latepf: late += pfl; pfl = []
        if cpf and j in (3, 7, 11, 15): late.append("\n".join(k2.codepf("F_step%d" % (j+4), 2, 5 if j > 6 else 63, 60)))
        if cpf and j == 19: late.append("\n".join(k2.codepf("F_e2", 8, 5, 60)))
        spread += pfl
        if j == 1: spread = ["v_lshlrev_b32 v61, 5, v2"] + gload + spread
        if j == 2: head = ["buffer_load_dword v62, off, s[36:39], 0 sc1"]
        if j == 2: spread += pload
        if j == 4: valu = ["v_readfirstlane_b32 s89, v62"] + gate[32:]
        if j == 5: valu = gate2 + gate[:32]
        if j == 6: spread.append("buffer_store_dwordx2 v[4:5], v3, s[20:23], s76 offen sc1")
        if j == 8:
            st()
            for dp in range(4):
                for mt in range(4):
                    a = acc1(2*dp, mt)[1]; b = acc1(2*dp+1, mt)[1]
                    for t in pack(a, a, b): k(t)
                    so = (84 if mt < 2 else 85) if dp < 2 else (86 if mt < 2 else 87)
                    stores.append("buffer_store_dwordx4 %s, v%d, s[20:23], s%d offen offset:%d %s" % (vr(a), VK, so, (dp & 1)*2048 + (mt & 1)*128, stsc))
            for dt in range(8):
                for mp in range(2):
                    f, a = acc1(8+dt, 2*mp); d = a
                    if f == "a":
                        t0 = XD + 8*mp
                        for n in range(8): k("v_accvgpr_read_b32 v%d, a%d" % (t0+n, a+n))
                        a = t0; d = acc1(4+dt, 2*mp+1)[1]
                    for t in pack(d, a, a+4): k(t)
                    stores.append("buffer_store_dwordx4 %s, v%d, s[20:23], s%d offen offset:%d %s" % (vr(d), VV, 47+mp, (dt >> 1)*1024 + (dt & 1)*256, stsc))
            st()
        if j >= 8:
            if latest: late += stores[(j-8)*nst:(j-8)*nst+nst]
            else: spread = pfl + stores[(j-8)*nst:(j-8)*nst+nst]
        jsig = 8 + (32+nst-1)//nst + (1 if latest else 0)
        if j == 7:
            def ab():
                k("v_mov_b32 v61, s89\ns_mov_b32 s66, 0x%x\nbuffer_store_dword v61, v%d, s[20:23], s66 offen sc1" % (WS_FLAG + 4*0x8000, VFLAG))
        if j == jsig:
            def ab():
                k("v_mov_b32 v60, s89\nbuffer_store_dword v60, v%d, s[20:23], s32 offen sc1" % VFLAG)
        if j == 22:
            head = head + ["buffer_load_dword v%d, v1, s[20:23], s32 offen sc1" % VPOLL]; vx = -1
            def ab():
                k("v_cmp_gt_u32 s[66:67], 0x%x, v1\nv_cmp_ne_u32 vcc, s89, v%d\ns_and_b64 vcc, vcc, s[66:67]\ns_cbranch_vccnz F_spin1\nF_spin1_b:" % (BIGOFF, VPOLL))
        fb = pstep(k, lg, j, fb, head, ab, vm_extra=vx + (j in (8, jsig+1)) + prevlate, valu=valu, spread=spread, hgap=hgap, late=late)
        prevlate = nvm(late)
        if fine == "steps" and j not in (7, 23): st()
    cx.ool.append(("F_spin1", ["s_mov_b32 s88, 0", "F_spin1_l:", "s_sleep 4", "buffer_load_dword v%d, v1, s[20:23], s32 offen sc1" % VPOLL, "s_waitcnt vmcnt(0)",
                               "v_cmp_ne_u32 vcc, s89, v%d" % VPOLL, "s_and_b64 vcc, vcc, s[66:67]", "s_add_u32 s88, s88, 1", "s_cmp_gt_u32 s88, 0x10000", "s_cbranch_scc1 F_spin1_b", "s_cbranch_vccnz F_spin1_l"]))
    st()
    k("F_e2:")
    k("v_readfirstlane_b32 s33, v%d" % VFLAG)
    k("v_lshlrev_b32 v%d, 4, v2\ns_lshl_b32 s41, s52, 12\nv_add_u32 v%d, s41, v%d" % (k2.VLANE16, k2.VDMA, k2.VLANE16))
    k("s_add_u32 s58, s55, 1\ns_lshl_b32 s58, s58, 16\ns_add_u32 s58, s58, s40")
    k("s_mov_b32 s8, s20\ns_mov_b32 s9, s21\ns_mov_b32 s10, s58\ns_mov_b32 s11, 0x20000")
    k("v_and_b32 v3, 31, v2\nv_lshrrev_b32 v4, 5, v2\nv_lshlrev_b32 v5, 2, v3")
    k("s_lshl_b32 s64, s56, 7\ns_lshl_b32 s65, s57, 7\ns_add_u32 s64, s64, 0x%x\ns_add_u32 s65, s65, 0x%x" % (WS_G, WS_G))
    k("s_waitcnt vmcnt(0) lgkmcnt(0)\ns_barrier")
    if fine == "e2": st()
    vq = []
    for u in range(6):
        for n in range(4):
            vq.append(("s_mov_b32 m0, s41\ns_add_u32 s41, s41, 0x4000\n" if n == 0 else "") + "buffer_load_dwordx4 v%d, s[8:11], s40 offen offset:%d lds" % (k2.VDMA, n*1024) + ("\ns_add_u32 s40, s40, 0x4000" if n == 3 else ""))
    vq.append("buffer_load_dword v%d, v5, s[20:23], s64 offen sc1" % k2.G1[0]); vq.append("buffer_load_dword v%d, v5, s[20:23], s65 offen sc1" % k2.G1[1])
    k0 = k; cnt = [0]
    def k(t, every=22):
        for l in t.split("\n"):
            k0(l); cnt[0] += 1
            if cnt[0] % every == 0 and vq and l.startswith("v_"): k0(vq.pop(0))
    for t in range(2):
        for mt in range(4):
            a = acc2(8+2*t, mt)[1]; b = acc2(9+2*t, mt)[1]
            for x in pack(a, a, b): k(x)
    PK, PQ = 96, 160
    for t, base in ((1, PK), (0, PQ)):
        for mt in range(4):
            for ft in range(2):
                k("v_mfma_f32_16x16x32_bf16 %s, %s, %s, 0" % (vr(base + mt*8 + ft*4), vr(WPHI+4*ft, 4, "a"), vr(acc2(8+2*t, mt)[1])))
    if fine == "e2": st()
    k("s_mov_b32 s60, %s\ns_mov_b32 s61, s60" % f32(LOG2E * 128 ** -0.5))
    TQ = 192
    n_ = 0
    for fr in range(2):
        for dp in range(4):
            dst = (k2.QA, k2.QB)[fr] + 8*dp
            for b in range(2):
                mt = 2*fr + b; t = TQ + 8*(n_ % 4); n_ += 1
                for h2 in range(2):
                    a = acc2(2*dp + h2, mt)[1]
                    for n in range(4): k("v_accvgpr_read_b32 v%d, a%d" % (t + 4*h2 + n, a + n))
                for n in range(0, 8, 2): k("v_pk_mul_f32 v[%d:%d], v[%d:%d], s[60:61]" % (t+n, t+n+1, t+n, t+n+1))
                for x in pack(dst + 4*b, t, t+4): k(x)
            if dp or fr:
                pd = prev
                for n in range(4): k("v_permlane16_swap_b32 v%d, v%d" % (pd+n, pd+4+n))
            prev = dst
    st()
    VCH = 128
    for p in range(2):
        for tau in range(2):
            a = acc2(12+tau, 2*p)[1]; t = TQ + 8*((p*2+tau) % 2)
            for n in range(8): k("v_accvgpr_read_b32 v%d, a%d" % (t+n, a+n))
            for x in pack(VCH + (p*2+tau)*4, t, t+4): k(x)
    for n in range(4): k("v_permlane16_swap_b32 v%d, v%d" % (prev+n, prev+4+n))
    SCR = 98304
    k("v_and_b32 v12, 15, v2\nv_lshrrev_b32 v13, 4, v2\ns_mul_i32 s62, s52, 8704\ns_add_u32 s62, s62, %d\nv_mov_b32 v14, s62\ns_movk_i32 s62, 136" % SCR)
    k("v_mad_u32_u24 v12, v12, s62, v14\nv_lshl_add_u32 v12, v13, 3, v12")
    k("v_lshrrev_b32 v13, 2, v2\nv_mad_u32_u24 v13, v13, s62, v14\nv_and_b32 v15, 3, v2\nv_lshl_add_u32 v13, v15, 3, v13")
    TA, TB = 192, 80
    TB = None
    if fine == "e2": st()
    L = merge(softmax2(PK, PK+8, 192), softmax2(PK+16, PK+24, 228))
    for x in L: k(x)
    if fine == "e2": st()
    for m in range(4):
        for sg in range(2):
            for ft in range(2):
                b = PK + 8*m + 4*sg + 2*ft
                k("ds_write_b64 v12, v[%d:%d] offset:%d" % (b, b+1, m*16*136 + sg*64 + ft*32))
    k("v_mov_b32 v144, 0x3f803f80\nv_mov_b32 v145, v144\nv_mov_b32 v146, v144\nv_mov_b32 v147, v144")
    k("s_waitcnt lgkmcnt(0)")
    AFa = 64
    for p in range(2):
        for F in range(4):
            for hb in range(2):
                b = AFa + (p*4+F)*4 + 2*hb
                k("ds_read_b64_tr_b16 a[%d:%d], v13 offset:%d" % (b, b+1, (32*p+16*hb)*136 + 32*F))
    L = merge(softmax2(PQ, PQ+8, 192), softmax2(PQ+16, PQ+24, 228))
    cut = len(L)//3
    for x in L[:cut]: k(x)
    if fine == "e2": st()
    k("s_waitcnt lgkmcnt(0)\ns_barrier")
    def kva(t): return 96 + 4*t if t < 8 else 232 + 4*(t-8)
    mf = []
    for p in range(2):
        for F in range(4):
            for c in range(3):
                d = vr(kva(F*3+c), 4, "a"); B = vr(VCH + (p*2+c)*4) if c < 2 else vr(144)
                mf.append("v_mfma_f32_16x16x32_bf16 %s, %s, %s, %s" % (d, vr(AFa + (p*4+F)*4, 4, "a"), B, "0" if p == 0 else d))
    for x in mf: k(x)
    if fine == "e2": st()
    cut2 = cut + 40
    for x in L[cut:cut2]: k(x)
    k("s_mul_i32 s62, s52, 12288\ns_add_u32 s62, s62, %d\nv_add_u32 v12, s62, v%d" % (SCR, k2.VLANE16))
    for t in range(12): k("ds_write_b128 v12, %s offset:%d" % (vr(kva(t), 4, "a"), t*1024))
    for x in L[cut2:]: k(x)
    if fine == "e2": st()
    k("s_mul_i32 s62, s52, 3072\ns_add_u32 s63, s62, %d\nv_add_u32 v12, s63, v%d" % (SCR, k2.VLANE16))
    k("s_waitcnt lgkmcnt(0)\ns_barrier")
    for t in range(3):
        for w in range(4): k("ds_read_b128 %s, v12 offset:%d" % (vr(96 + (t*4+w)*4), w*12288 + t*1024))
    k("s_lshl_b32 s58, s53, 3\ns_add_u32 s58, s58, s54\ns_mul_i32 s58, s58, 12288\ns_add_u32 s58, s58, s62\ns_add_u32 s58, s58, 0x%x" % WS_KVP)
    for r in range(64): k("v_accvgpr_write_b32 a%d, 0" % r)
    assert not vq
    k = k0
    k("s_waitcnt lgkmcnt(0)")
    for t in range(3):
        b = 96 + t*16
        for w in range(1, 4):
            for r in (0, 2): k("v_pk_add_f32 v[%d:%d], v[%d:%d], v[%d:%d]" % (b+r, b+r+1, b+r, b+r+1, b+4*w+r, b+4*w+r+1))
        k("buffer_store_dwordx4 %s, v%d, s[20:23], s58 offen offset:%d sc1" % (vr(b), k2.VLANE16, t*1024))
    st()
    k2.attention(k, cx, st, younger=3, PQ=PQ, op=k3g, cpf=cpf)
    k3g.outproj(k, cx, st)
    st.store(20, 52, 0)
    k("F_end:\ns_endpgm")
    k2.emit_ool(k, cx)
    rep = finish(k)
    return k, rep
```

```python
from common import *

OA, OB = 0, 64
KPOOL = [128 + 4*n for n in range(16)]
VPOOL = [192 + 4*n for n in range(16)]
QA, QB = 16, 48
def S(par, f): return 80 + par*32 + f*16
NEG = [144, 160, 176]
def P(f): return 192 + 8*f
E0 = 208
G1 = [224, 225]; TS = [226, 227]; L = [228, 229]; THR = [230, 231]
VI = [8, 9]; VLANE16 = 10; VDMA = 11; VST = 12
RT = 232
BAR = 22
BIG = 2.0**64

G0 = [-10, 6]
def softmax_sched(par, f):
    s = S(par, f); e = E0 + 8*f; p = P(f); ts = TS[f]; g0 = G0[f]
    ops = []
    for j in range(16): ops.append((g0 + j, "e", "v_exp_f32 v%d, v%d" % (e + j % 8, s + j)))
    for j in range(0, 16, 2):
        a, b = e + j % 8, e + (j+1) % 8
        g = g0 + j + 2
        cv = "v_cvt_pk_bf16_f32 v%d, v%d, v%d" % (p + j//2, a, b)
        if j == 0:
            ops += [(g, "p", "v_add_f32 v%d, v%d, v%d" % (ts, a, b)), (g+1, "p", cv)]
        else:
            ops += [(g, "p", "v_add_f32 v%d, v%d, v%d" % (ts, ts, a)), (g + (j < 14), "p", "v_add_f32 v%d, v%d, v%d" % (ts, ts, b)), (g + (j == 14), "p", cv)]
    ops.append((g0 + 16, "k", "v_cmp_nge_f32 vcc, s39, v%d" % ts))
    ops.sort(key=lambda x: (x[0], {"p": 0, "k": 1, "e": 2}[x[1]]))
    return ops

def prep_list(neg, thr, t0=RT):
    out = []
    for r in range(16):
        kap = 8*(r >> 2) + (r & 3)
        t = t0 + (r % 4)
        out.append("v_add_f32 v%d, %s, v%d" % (t, f32(-kap*BIG), thr))
        out.append("v_min_f32 v%d, v%d, v%d" % (neg + r, neg + r, t))
    return out

def k_reads(kind, vi):
    if kind == "dual":
        return [("ds_read_b128 %s, v%d offset:%d" % (vr(KPOOL[n], 4, "a"), vi, n*1024), ("K", n)) for n in range(8)]
    return [("ds_read_b128 %s, v%d offset:%d" % (vr(KPOOL[n], 4, "a"), vi, (n & 1)*16384 + (n >> 1)*1024), ("K", n)) for n in range(16)]
NTAIL = {"dual": 8, "single": 10}

class Ctx:
    def __init__(self, k): self.k = k; self.rare = []; self.n = 0; self.ool = []

def rowmax(k, s, d, t):
    k("v_max3_f32 v%d, v%d, v%d, v%d" % (d, s, s+1, s+2))
    for j in range(3, 15, 2): k("v_max3_f32 v%d, v%d, v%d, v%d" % (d, d, s+j, s+j+1))
    k("v_max_f32 v%d, v%d, v%d" % (d, d, s+15))
    k("v_mov_b32 v%d, v%d\nv_permlane32_swap_b32 v%d, v%d\nv_max_f32 v%d, v%d, v%d" % (t, d, d, t, d, d, t))

def emit_rare(k, lab, back, par, f, qk, pv, redo):
    k("%s:" % lab)
    k("s_nop 15\ns_nop 15")
    d, t = RT, RT+1
    rowmax(k, S(par, f), d, t)
    k("v_max_f32 v%d, 0, v%d" % (d, d))
    isB = (pv == "single") or f == 1
    adj = [S(par, f)]
    if pv == "single": adj.append(S(par, 1-f))
    if qk == "dual": adj.append(S(1-par, f))
    elif qk == "single" and isB: adj += [S(1-par, 0), S(1-par, 1)]
    if qk != "none": adj += [NEG[1], NEG[2]] if isB else [NEG[0]]
    for b in adj:
        for j in range(16): k("v_sub_f32 v%d, v%d, v%d" % (b+j, b+j, d))
    k("v_exp_f32 v%d, -v%d" % (t, d))
    o = OB if isB else OA; l = L[1 if isB else 0]
    k("s_nop 0\nv_mul_f32 v%d, v%d, v%d" % (l, l, t))
    for j in range(0, 64, 4):
        for n in range(4): k("v_accvgpr_read_b32 v%d, a%d" % (RT+4+n, o+j+n))
        for n in range(4): k("v_mul_f32 v%d, v%d, v%d" % (RT+4+n, RT+4+n, t))
        for n in range(4): k("v_accvgpr_write_b32 a%d, v%d" % (o+j+n, RT+4+n))
    for x in redo: k(x)
    k("s_nop 3\ns_branch %s" % back)

def codepf(label, n, va, vd, sidx=45):
    return ["v_min_u32 v%d, %d, v0" % (va, n-1), "v_mad_u32_u24 v%d, s%d, %d, v%d" % (va, sidx, n, va), "v_lshlrev_b32 v%d, 7, v%d" % (va, va)] + \
           (["v_add_u32 v%d, %s-F_pc, v%d" % (va, label, va)] if label != "F_pc" else []) + ["global_load_dword v%d, v%d, s[90:91]" % (vd, va)]
def flag_store(kind):
    return ["v_mov_b32 v13, 0x%x" % BIGOFF, "v_writelane_b32 v13, s33, 0", "v_mov_b32 v5, s89", "s_mov_b32 s66, 0x%x" % (WS_FLAG + kind*0x8000),
            "buffer_store_dword v5, v13, s[20:23], s66 offen sc1"]
def poll_check(k, cx, name, vres, poll, mask):
    k("v_cmp_ne_u32 vcc, s89, v%d\ns_and_b64 vcc, vcc, s[%d:%d]\ns_cbranch_vccnz %s\n%s_b:" % (vres, mask, mask+1, name, name))
    cx.ool.append((name, ["s_mov_b32 s88, 0", "%s_l:" % name, "s_sleep 2", poll, "s_waitcnt vmcnt(0)", "v_cmp_ne_u32 vcc, s89, v%d" % vres, "s_and_b64 vcc, vcc, s[%d:%d]" % (mask, mask+1),
                          "s_add_u32 s88, s88, 1", "s_cmp_gt_u32 s88, 0x10000", "s_cbranch_scc1 %s_b" % name, "s_cbranch_vccnz %s_l" % name]))

def step(cx, lg, par, qk, pv, nextqk, prepA=False, prepB=False, extra=None, vmw=8, sig=False, sig2=False):
    k = cx.k
    mf = []; needs = []
    if qk == "dual":
        for ks in range(8):
            for f in range(2):
                d = vr(S(1-par, f), 16); c = vr(NEG[f], 16) if ks == 0 else d
                mf.append("v_mfma_f32_32x32x16_bf16 %s, %s, %s, %s" % (d, vr(KPOOL[ks], 4, "a"), vr((QA, QB)[f] + 4*ks), c)); needs.append({("K", ks)})
    elif qk == "single":
        for ks in range(8):
            for f in range(2):
                d = vr(S(1-par, f), 16); c = vr(NEG[1+f], 16) if ks == 0 else d
                mf.append("v_mfma_f32_32x32x16_bf16 %s, %s, %s, %s" % (d, vr(KPOOL[2*ks+f], 4, "a"), vr(QB + 4*ks), c)); needs.append({("K", 2*ks+f)})
    else:
        for n in range(16): mf.append(None); needs.append(set())
    for f in range(2):
        for u in range(2):
            for db in range(4):
                n = u*4 + db + (8*f if pv == "single" else 0)
                o = (OB if (pv == "single" or f == 1) else OA) + 16*db
                mf.append("v_mfma_f32_32x32x16_bf16 %s, %s, %s, %s" % (vr(o, 16, "a"), vr(VPOOL[n], 4, "a"), vr(P(f) + 4*u), vr(o, 16, "a"))); needs.append({("V", n)})
    fill = [[] for _ in range(32)]
    if qk != "none":
        rest = k_reads(qk, VI[1-par])[NTAIL[qk]:]
        for n, (t, tag) in enumerate(rest): fill[n].append(("lds", t, tag))
    nv = 8 if pv == "dual" else 16
    for n in range(nv):
        t = "ds_read_b128 %s, v%d offset:%d" % (vr(VPOOL[n], 4, "a"), VI[par], 8192 + (n >> 3)*16384 + (n & 7)*1024)
        g = (3 + (n*10)//8) if pv == "dual" else (3 + n)
        if qk == "none": g = n if n < 8 else 8 + (n-8)//2
        fill[g].append(("lds", t, ("V", n)))
    if nextqk != "end":
        nd = 4 if pv == "dual" else 8
        for n in range(nd):
            t = ""
            if n % 4 == 0: t = "s_mov_b32 m0, s41\ns_add_u32 s41, s41, 0x4000\ns_and_b32 s41, s41, 0x1ffff\n"
            t += "buffer_load_dwordx4 v%d, s[8:11], s40 offen offset:%d lds" % (VDMA, (n % 4)*1024)
            if n % 4 == 3: t += "\ns_add_u32 s40, s40, 0x4000"
            fill[1 + (n*(BAR-2))//nd].append(("raw", t, None))
    if nextqk in ("dual", "single"):
        fill[BAR-1].append(("raw", "v_add_u32 v%d, s42, v%d\ns_add_u32 s42, s42, 0x%x\ns_and_b32 s42, s42, 0x1ffff" % (VI[par], VLANE16, 0x4000 if nextqk == "dual" else 0x8000), None))
        for n, (t, tag) in enumerate(k_reads(nextqk, VI[par])[:NTAIL[nextqk]]): fill[BAR+n].append(("lds", t, ("n",)+tag))
    for f in range(2):
        for (g, kind, t) in softmax_sched(par, f):
            if g >= 0: fill[g].append(("valu" + kind, t, f))
        fill[G0[f] + 17].append(("check", f, None))
    if qk != "none":
        for (g, kind, t) in softmax_sched(1-par, 0):
            if g < 0: fill[g + 32].append(("valu" + kind, t, "n"))
    if extra:
        for g, t in extra: fill[g].append(("raw", t, None))
    done = {0: [t for g, _, t in softmax_sched(par, 0) if g < 0], 1: [], "n": []}
    for g in range(32):
        if g == BAR and nextqk != "end":
            if sig:
                k("s_cmp_eq_u32 s44, 1\ns_cbranch_scc1 K2_sig")
                cx.ool.append(("K2_sig", ["s_waitcnt lgkmcnt(0) vmcnt(8)", "s_barrier"] + flag_store(1)))
            k("s_waitcnt lgkmcnt(0) vmcnt(%d)\ns_barrier" % vmw); lg.drain()
            if sig: k("K2_sig_b:")
            if sig2:
                k("s_cmp_eq_u32 s44, s79\ns_cbranch_scc1 K2_sig2\nK2_sig2_b:")
                cx.ool.append(("K2_sig2", flag_store(2)))
        w = lg.need(needs[g])
        if w: k(w)
        if mf[g]: k(mf[g])
        for kind, t, tag in sorted(fill[g], key=lambda x: {"lds": 0, "raw": 1, "valup": 2, "valuk": 3, "check": 4, "value": 5}[x[0]]):
            if kind == "check":
                f = t; cx.n += 1
                lab, back = "K2_rare%d" % cx.n, "K2_back%d" % cx.n
                k("s_cbranch_vccnz %s\n%s:" % (lab, back))
                li = L[1] if (pv == "single" or f == 1) else L[0]
                fill[g+1].insert(0, ("valup", "v_add_f32 v%d, v%d, v%d" % (li, li, TS[f]), None))
                redo = list(done[f])
                if pv == "single" and f == 0: redo += done[1]
                if f == 1 and qk == "single": redo += done["n"]
                cx.rare.append((lab, back, par, f, qk, pv, redo))
            else:
                k(t)
                if kind == "lds": lg.issue(tag)
                if kind in ("valup", "value") and tag is not None: done[tag].append(t)
        if g == 4:
            for on, sthr, blocks in ((prepA, 45, [(NEG[0], THR[0], 32)]), (prepB, 46, [(NEG[1], THR[1], 32), (NEG[2], THR[1], 32)])):
                if not on: continue
                cx.n += 1; lab = "K2_prep%d" % cx.n
                k("s_cmp_ge_i32 s44, s%d\ns_cbranch_scc1 %s\n%s_b:" % (sthr, lab, lab))
                body = []
                for neg, thr, dec in blocks:
                    body += prep_list(neg, thr)
                    body.append("v_add_f32 v%d, %s, v%d" % (thr, f32(-dec*BIG), thr))
                cx.ool.append((lab, body))
    k("s_add_u32 s44, s44, 1")
    lg.q = [t[1:] if t[0] == "n" else t for t in lg.q]

def frag_epilogue(k, o, l, g1, soff, T, nb=4):
    t, r = RT, RT+1
    k("v_mov_b32 v%d, v%d\nv_permlane32_swap_b32 v%d, v%d\nv_add_f32 v%d, v%d, v%d\nv_rcp_f32 v%d, v%d\nv_mul_f32 v%d, v%d, v%d\nv_mov_b32 v%d, v%d" % (t, l, l, t, t, t, l, t, t, t, t, g1, r, t))
    for db in range(4):
        for c in range(2):
            b = T + 8*((db*2+c) % nb)
            for n in range(8): k("v_accvgpr_read_b32 v%d, a%d" % (b+n, o + 16*db + 8*c + n))
            for n in range(0, 8, 2): k("v_pk_mul_f32 v[%d:%d], v[%d:%d], v[%d:%d]" % (b+n, b+n+1, b+n, b+n+1, t, r))
            for n in range(4): k("v_cvt_pk_bf16_f32 v%d, v%d, v%d" % (b+n, b+2*n, b+2*n+1))
            k("buffer_store_dwordx4 %s, v%d, s[20:23], s%d offen offset:%d sc1" % (vr(b), VST, soff, c*512))
        if db < 3: k("s_add_u32 s%d, s%d, 8192" % (soff, soff))

def emit_ool(k, cx):
    for lab, body in cx.ool:
        k("%s:" % lab)
        for x in body: k(x)
        k("s_branch %s_b" % lab)
    for r in cx.rare: emit_rare(k, *r)

THRS = 39
def attention(k, cx, st, younger, PQ, op, cpf=True):
    k("s_lshr_b32 s48, s2, 3")
    k("v_mov_b32 v%d, 0\nv_mov_b32 v%d, 0" % (L[0], L[1]))
    k("s_lshl_b32 s66, s52, 5\nv_add_u32 v13, s66, v3\nv_lshlrev_b32 v14, 2, v4\nv_sub_u32 v13, v13, v14\nv_cvt_f32_i32 v13, v13\nv_add_f32 v13, 0.5, v13")
    k("v_mul_f32 v%d, %s, v13\nv_mov_b32 v%d, v%d" % (THR[0], f32(BIG), THR[1], THR[0]))
    k("v_and_b32 v13, 15, v3\nv_lshlrev_b32 v13, 4, v13\nv_lshl_add_u32 v13, v4, 8, v13\nv_lshrrev_b32 v14, 4, v3\nv_lshl_add_u32 v13, v14, 10, v13\ns_lshl_b32 s66, s52, 11\nv_add_u32 v%d, s66, v13" % VST)
    k("s_mul_i32 s77, s54, %d\ns_mul_i32 s78, s55, %d\ns_lshl_b32 s66, s53, 15\ns_add_u32 s66, s66, 0x%x" % (160*8192, 160*8192, WS_CTX + 32*8192))
    k("s_add_u32 s69, s77, s66\ns_add_u32 s70, s78, s66")
    k("s_mov_b32 s39, %s\ns_mov_b32 s44, 0\ns_lshl_b32 s47, s54, 2\ns_sub_u32 s45, s47, 2\ns_mov_b32 s46, 30" % f32(65536.0))
    k("v_mov_b32 v%d, v%d\nv_add_u32 v%d, 0x4000, v%d\ns_mov_b32 s42, 0x8000" % (VI[0], VLANE16, VI[1], VLANE16))
    srd(k, 12, 82, 8 << 20); srd(k, 16, 80, 2 << 20)
    k("v_lshlrev_b32 v14, 7, v0\nv_lshlrev_b32 v15, 5, v0\ns_lshl_b32 s75, s2, 15\ns_lshl_b32 s76, s2, 13")
    k("s_lshl_b32 s66, s52, 13\ns_add_u32 s66, s66, 0x20000\nv_add_u32 v13, s66, v%d\ns_lshl_b32 s79, s54, 2\ns_add_u32 s79, s79, 5\ns_mov_b64 s[30:31], 0xff" % VLANE16)
    k("s_waitcnt vmcnt(%d)\ns_barrier" % younger)
    lg = Lgkm()
    for t, tag in k_reads("dual", VI[0]): k(t); lg.issue(tag)
    for n in range(8): k("ds_write_b128 v13, %s offset:%d" % (vr(PQ + 4*n), n*1024)); lg.issue(("PW", n))
    k("v_sub_f32 v%d, 1.0, v%d\nv_sub_f32 v%d, 1.0, v%d" % (G1[0], G1[0], G1[1], G1[1]))
    for ks in range(8):
        w = lg.need({("K", ks)})
        if w: k(w)
        for f in range(2):
            d = vr(S(0, f), 16)
            k("v_mfma_f32_32x32x16_bf16 %s, %s, %s, %s" % (d, vr(KPOOL[ks], 4, "a"), vr((QA, QB)[f] + 4*ks), "0" if ks == 0 else d))
            for n in range(4): k("v_accvgpr_write_b32 a%d, 0" % (64 + (ks*2+f)*4 + n))
    k(lg.need({("PW", 7)}))
    for t, tag in k_reads("dual", VI[1]): k(t); lg.issue(tag)
    dec = "v_add_f32 v%d, %s, v%d" % (THR[0], f32(-32*BIG), THR[0])
    k("s_nop 3\ns_cmp_eq_u32 s54, 0\ns_cbranch_scc1 K2_mask0\nK2_mask0_b:")
    cx.ool.append(("K2_mask0", prep_list(S(0, 0), THR[0]) + [dec]))
    for f in range(2):
        d = RT + 8 + f
        rowmax(k, S(0, f), d, RT + 10 + f)
        for j in range(16): k("v_sub_f32 v%d, v%d, v%d" % (S(0, f)+j, S(0, f)+j, d))
        for nb in ([NEG[0]] if f == 0 else [NEG[1], NEG[2]]):
            for j in range(16): k("v_sub_f32 v%d, 0, v%d" % (nb+j, d))
    k("s_cmp_eq_u32 s54, 0\ns_cbranch_scc1 K2_mask1\nK2_mask1_b:")
    cx.ool.append(("K2_mask1", prep_list(NEG[0], THR[0]) + [dec]))
    for g, _, t in softmax_sched(0, 0):
        if g < 0: k(t)
    st()
    stD = list(lg.q)
    k("s_lshl_b32 s47, s54, 1\ns_add_u32 s47, s47, 1")
    k("K2_loopD:")
    step(cx, lg, 0, "dual", "dual", "dual", prepA=True, vmw=16)
    step(cx, lg, 1, "dual", "dual", "dual", prepA=True, vmw=16, sig=True)
    assert lg.q == stD, (lg.q, stD)
    k("s_sub_u32 s47, s47, 1\ns_cmp_lg_u32 s47, 0\ns_cbranch_scc1 K2_loopD")
    poll = "buffer_load_dword v13, v1, s[20:23], s49 offen sc1"
    cp = codepf("K2_tail", 4, 5, 247, 48) if cpf else []
    for x in cp[:-1]: k(x)
    step(cx, lg, 0, "dual", "dual", "single", prepB=True, vmw=15 + len(cp[-1:]),
         extra=[(0, poll + "\nbuffer_load_dword v247, v14, s[12:15], s75 offen\nbuffer_load_dword v247, v15, s[16:19], s76 offen" + "".join("\n" + x for x in cp[-1:]))])
    k("s_mul_i32 s71, s53, %d\ns_add_u32 s71, s71, 0x%x\ns_mul_i32 s72, s52, 3072\ns_add_u32 s72, s72, s71\ns_add_u32 s72, s72, 2048" % (8*12288, WS_KVP))
    k("s_lshr_b32 s66, s52, 1\ns_mul_i32 s66, s66, 6144\ns_add_u32 s71, s71, s66\ns_and_b32 s66, s52, 1\ns_lshl_b32 s66, s66, 10\ns_add_u32 s71, s71, s66")
    k("v_and_b32 v14, 7, v2\nv_mul_u32_u24 v14, 0x3000, v14\nv_add_u32 v14, v14, v%d\nv_and_b32 v15, 15, v2\nv_lshlrev_b32 v15, 2, v15" % VLANE16)
    k("s_waitcnt vmcnt(%d)" % (6 + len(cp[-1:])))
    poll_check(k, cx, "K2_spin", 13, poll, 30)
    def kvd(p, tt): return vr(QA + (p*2+tt)*4) if p < 4 else vr(224 + ((p-4)*2+tt)*4, 4, "a")
    ex = []
    for p in range(8):
        for tt in range(2):
            ex.append("buffer_load_dwordx4 %s, v%d, s[20:23], s71 offen offset:%d sc1" % (kvd(p, tt), VLANE16, tt*3072) + ("\ns_add_u32 s71, s71, 12288" if tt else ""))
    ex.append("buffer_load_dwordx4 v[248:251], v14, s[20:23], s72 offen sc1")
    for mt in range(4):
        ex.append("buffer_load_dword v%d, v15, s[20:23], s%d offen offset:%d sc1" % (252+mt, 64 + (mt >> 1), (mt & 1)*64))
    step(cx, lg, 1, "single", "dual", "single", prepB=True, vmw=8+len(ex), extra=list(enumerate(ex)))
    stS = list(lg.q)
    st()
    frag_epilogue(k, OA, L[0], G1[0], 69, RT+8, nb=1)
    k("s_lshl_b32 s66, s52, 13\ns_add_u32 s66, s66, 0x20000\nv_add_u32 v13, s66, v%d\nv_lshrrev_b32 v14, 1, v%d\nv_add_u32 v15, s66, v14\nv_add_u32 v14, 0x20000, v14\nv_add_u32 v5, 0x20000, v%d" % (VLANE16, VLANE16, VLANE16))
    for n in range(8): k("ds_read_b128 %s, v13 offset:%d" % (vr(4*n, 4, "a"), n*1024))
    k("s_waitcnt vmcnt(8)")
    for p in range(1, 8):
        if p >= 4:
            for n in range(8): k("v_accvgpr_read_b32 v%d, a%d" % (RT+8+n, 224 + (p-4)*8 + n))
        src = QA + p*8 if p < 4 else RT+8
        for r in range(0, 8, 2): k("v_pk_add_f32 v[%d:%d], v[%d:%d], v[%d:%d]" % (QA+r, QA+r+1, QA+r, QA+r+1, src+r, src+r+1))
        if p <= 3:
            for r in range(4): k("v_add_f32_dpp v%d, v%d, v%d row_ror:%d row_mask:0xf bank_mask:0xf" % (248+r, 248+r, 248+r, 1 << (p-1)))
    for n in range(4): k("v_cvt_pk_bf16_f32 v%d, v%d, v%d" % (QA+n, QA+2*n, QA+2*n+1))
    k("v_cvt_pk_bf16_f32 v248, v248, v249\nv_cvt_pk_bf16_f32 v249, v250, v251")
    k("s_waitcnt lgkmcnt(0)\nds_write_b128 v13, %s\nds_write_b64 v15, v[248:249] offset:1024" % vr(QA))
    k("s_lshl_b32 s72, s53, 13\ns_lshl_b32 s73, s52, 11\ns_add_u32 s72, s72, s73\ns_add_u32 s72, s72, 0x%x\ns_add_u32 s73, s72, s77\ns_add_u32 s74, s72, s78" % WS_CTX)
    k("s_waitcnt lgkmcnt(0)\ns_barrier")
    AFR = 32
    for sg in range(2):
        for hb in range(2): k("ds_read_b64 a[%d:%d], v14 offset:%d" % (AFR + (4+sg)*4 + 2*hb, AFR + (4+sg)*4 + 2*hb + 1, (2*sg+hb)*8192 + 1024))
    for c in range(2):
        for sg in range(2): k("ds_read_b128 %s, v5 offset:%d" % (vr(AFR + (c*2+sg)*4, 4, "a"), (c + 2*sg)*8192))
    k("s_waitcnt lgkmcnt(0)")
    for c in (2, 0, 1):
        for mt in range(4):
            d = vr(RT + 4*mt) if c == 2 else vr(QA + mt*8 + c*4)
            for sg in range(2):
                k("v_mfma_f32_16x16x32_bf16 %s, %s, %s, %s" % (d, vr(AFR + (c*2+sg)*4, 4, "a"), vr((mt*2+sg)*4, 4, "a"), "0" if sg == 0 else d))
    for mt in range(4):
        dn = RT + 4*mt
        k("v_add_f32 v%d, %s, v%d\nv_rcp_f32 v%d, v%d\nv_mul_f32 v%d, v%d, v%d\nv_mov_b32 v%d, v%d" % (dn, f32(1e-6), dn, dn, dn, dn, dn, 252+mt, dn+1, dn))
    for mt in range(4):
        b = QA + mt*8; dn = RT + 4*mt
        for n in range(0, 8, 2): k("v_pk_mul_f32 v[%d:%d], v[%d:%d], v[%d:%d]" % (b+n, b+n+1, b+n, b+n+1, dn, dn+1))
        for n in range(4): k("v_cvt_pk_bf16_f32 v%d, v%d, v%d" % (b+n, b+2*n, b+2*n+1))
        k("buffer_store_dwordx4 %s, v%d, s[20:23], s%d offen offset:%d sc1" % (vr(b), VLANE16, 73 + (mt >> 1), (mt & 1)*1024))
    st()
    k("s_lshl_b32 s47, s54, 1\ns_sub_u32 s47, 14, s47\ns_cmp_eq_u32 s47, 0\ns_cbranch_scc1 K2_tail")
    k("K2_loopS:")
    step(cx, lg, 0, "single", "single", "single", prepB=True)
    step(cx, lg, 1, "single", "single", "single", prepB=True, sig2=True)
    assert lg.q == stS
    k("s_sub_u32 s47, s47, 1\ns_cmp_lg_u32 s47, 0\ns_cbranch_scc1 K2_loopS")
    k("K2_tail:")
    if st.fine == "op": st()
    k("s_and_b32 s60, s2, 6\ns_bfe_u32 s61, s2, 0x10003\ns_add_u32 s62, s60, s61\ns_sub_u32 s63, 14, s60\ns_add_u32 s63, s63, s61\ns_sub_u32 s66, 15, s63")
    k("s_bitcmp1_b32 s2, 4\ns_cselect_b32 s60, s63, s62\ns_cselect_b32 s59, s66, s62\ns_cselect_b32 s28, 0xf, 0\ns_mov_b32 s29, 0\ns_lshl_b32 s59, s59, 7")
    k("s_lshr_b32 s61, s2, 5\ns_and_b32 s62, s2, 1\ns_mov_b32 s49, 0x%x\ns_mov_b64 s[30:31], 0xf" % (WS_FLAG + 2*0x8000))
    op.setup(k)
    cx.ool.append(("K2_sig3", ["s_waitcnt vmcnt(0)", "s_barrier"] + flag_store(2)))
    step(cx, lg, 0, "single", "single", "end", extra=[(17, "s_cmp_eq_u32 s54, 7\ns_cbranch_scc1 K2_sig3\nK2_sig3_b:"), (19, poll)])
    if st.fine == "op": st()
    k("s_waitcnt vmcnt(0)")
    poll_check(k, cx, "K2_spin2", 13, poll, 30)
    k("s_barrier")
    if st.fine == "op": st()
    ex = op.first_loads()
    step(cx, lg, 1, "none", "single", "end", extra=[((n*31)//len(ex), t) for n, t in enumerate(ex)])
    st()
    frag_epilogue(k, OB, L[1], G1[1], 70, S(1, 0))
    st()
```

```python
from common import *
import k2
AR = 16
WFR = 144
VA = [248, 249, 250, 251]
WDV = [252, 253, 254, 255]
WRA = [14, 15]
VL = 10
def acc(rt, nt): return (rt*8+nt)*4

def vmem_ops(slot):
    ops = []
    for ch in range(2):
        ops.append("s_add_u32 m0, s46, %d" % (slot*8192 + ch*4096))
        if ch == 1: ops.append("s_add_u32 s35, s35, 8192")
        for p in range(4): ops.append("buffer_load_dwordx4 v%d, s[8:11], s%d offen offset:%d lds" % (WDV[p], 34 if ch == 0 else 42, p*1024))
        ops.append("s_add_u32 s%d, s%d, 0x10000" % ((34, 34) if ch == 0 else (42, 42)))
    for rt in range(8):
        ops.append("buffer_load_dwordx4 %s, v%d, s[20:23], s35 offen offset:%d sc1" % (vr(AR + slot*32 + rt*4), VA[rt >> 1], (rt & 1)*1024))
    return ops
def w_reads(slot, par):
    out = []
    for nt in range(8):
        for hb in range(2):
            b = WFR + par*32 + nt*4 + 2*hb
            out.append(("ds_read_b64_tr_b16 v[%d:%d], v%d offset:%d" % (b, b+1, WRA[(nt >> 1) & 1], slot*8192 + (nt >> 2)*4096 + hb*1024 + 8*(nt & 1)), ("W", nt)))
    return out

def setup(k):
    k("v_lshrrev_b32 v3, 3, v2\nv_and_b32 v4, 7, v2\nv_bfe_u32 v5, v3, 1, 1\nv_lshlrev_b32 v5, 2, v5\nv_xor_b32 v4, v4, v5\nv_lshlrev_b32 v4, 4, v4\nv_lshl_add_u32 v4, v3, 11, v4")
    k("s_lshl_b32 s55, s61, 8\nv_add_u32 v%d, s55, v4" % WDV[0])
    for p in range(1, 4): k("v_add_u32 v%d, %d, v%d" % (WDV[p], p*15360, WDV[0]))
    for lp in range(4):
        k("s_add_u32 s55, s52, %d\ns_and_b32 s55, s55, 3\ns_lshl_b32 s55, s55, 11\nv_add_u32 v%d, s55, v%d" % (lp, VA[lp], VL))
    k("s_lshl_b32 s57, s62, 4\ns_lshl_b32 s55, s52, 2\ns_add_u32 s57, s57, s55")
    k("s_mul_i32 s56, s60, %d\ns_add_u32 s56, s56, 0x%x\ns_lshl_b32 s55, s57, 13\ns_add_u32 s35, s56, s55" % (160*8192, WS_CTX - 8192))
    k("s_lshl_b32 s55, s57, 15\ns_add_u32 s40, s56, s55\ns_add_u32 s40, s40, %d" % (32*8192))
    k("s_lshl_b32 s63, s62, 7\ns_xor_b32 s55, s63, 128")
    k("s_lshl_b32 s34, s57, 16\ns_add_u32 s42, s34, s63\ns_add_u32 s34, s34, s55\ns_lshl_b32 s41, s57, 18\ns_add_u32 s43, s41, s63\ns_add_u32 s41, s41, s55")
    k("s_bitcmp1_b32 s54, 0\ns_cselect_b32 s55, 1, 3\ns_cmp_ge_u32 s52, s55\ns_addc_u32 s46, s52, 0\ns_lshl_b32 s46, s46, 15")
    k("s_mov_b32 s8, s16\ns_mov_b32 s9, s17\ns_mov_b32 s10, s18\ns_mov_b32 s11, 0x20000")
    k("v_lshrrev_b32 v3, 5, v2\nv_lshlrev_b32 v3, 11, v3\nv_bfe_u32 v4, v2, 2, 3\nv_lshl_add_u32 v3, v4, 7, v3\nv_add_u32 v3, s46, v3")
    k("v_bfe_u32 v4, v2, 3, 1\nv_lshlrev_b32 v4, 2, v4\nv_and_b32 v5, 3, v2\nv_or_b32 v4, v4, v5\nv_lshl_add_u32 v%d, v4, 4, v3\nv_xor_b32 v4, 4, v4\nv_lshl_add_u32 v%d, v4, 4, v3" % (WRA[0], WRA[1]))
    k("s_lshl_b32 s55, s57, 10\ns_add_u32 s55, s55, s59\nv_min_u32 v1, 3, v2\nv_lshlrev_b32 v1, 10, v1\nv_add_u32 v1, s55, v1")

NFIRST = [2]
def first_loads():
    ops = []
    for b in range(NFIRST[0]): ops += vmem_ops(b)
    out = []; cur = []
    for l in ops:
        cur.append(l)
        if l.startswith("buffer"):
            if len(cur) >= 2 and "m0" in cur[-2]: cur.insert(-1, "s_nop 0")
            out.append("\n".join(cur)); cur = []
    assert not cur
    return out

def outproj(k, cx, st):
    k("s_load_dwordx2 s[26:27], s[0:1], 88")
    k("s_mov_b32 s49, 0x%x" % (WS_FLAG + 3*0x8000))
    nf = NFIRST[0]
    k("s_waitcnt vmcnt(%d)" % (nf*16))
    lg = Lgkm()
    for t, tag in w_reads(0, 0): k(t); lg.issue(tag)
    poll = "buffer_load_dword v13, v1, s[20:23], s49 offen sc1"
    def block(slot, par, loads, vm, first=False, pre=None, rd=True, selfrd=False):
        if vm is not None: k("s_waitcnt vmcnt(%d)" % vm)
        if pre: pre()
        if selfrd:
            for t, tag in w_reads(slot, par): k(t); lg.issue(tag)
        fill = [[] for _ in range(64)]
        if rd:
            for n, (t, tag) in enumerate(w_reads((slot+1) % 4, 1-par)): fill[2 + (n*56)//16].append(("lds", t, ("n",)+tag))
        ops = []
        for s_ in loads: ops += vmem_ops(s_)
        nv = sum(l.startswith("buffer") for l in ops)
        free = [g for g in range(1, 63) if not fill[g]]
        dense = nv > len(free)
        if dense: free = list(range(1, 63))
        n = 0; pend = []
        for l in ops:
            if l.startswith("buffer"):
                g = free[(n*len(free))//nv]; n += 1
                for p in pend: fill[g-1].append(("raw", p, None))
                pend = []
                fill[g].append(("raw", l, None))
            else: pend.append(l)
        assert not pend
        for g in range(64):
            nt, rt = divmod(g, 8)
            if rt == 0:
                w = lg.need({("W", nt)})
                if w: k(w)
            a = vr(acc(rt, nt), 4, "a")
            k("v_mfma_f32_16x16x32_bf16 %s, %s, %s, %s" % (a, vr(WFR + par*32 + nt*4), vr(AR + slot*32 + rt*4), "0" if first else a))
            for kind, t, tag in sorted(fill[g], key=lambda x: (x[0] != "lds", not x[1].startswith("buffer"))):
                k(t)
                if kind == "lds": lg.issue(tag)
        lg.q = [t[1:] if t[0] == "n" else t for t in lg.q]
    st()
    block(0, 0, list(range(nf, 4)), nf*16 - 16, first=True)
    def sig():
        k("s_barrier")
        for x in k2.flag_store(3): k(x)
    block(1, 1, [], 16 if nf == 3 else 24, pre=sig)
    block(2, 0, [], 9, pre=lambda: k(poll))
    def sw():
        k2.poll_check(k, cx, "K3_spin", 13, poll, 28)
        k("s_mov_b32 s8, s12\ns_mov_b32 s9, s13\ns_mov_b32 s10, s14\ns_mov_b32 s35, s40\ns_mov_b32 s34, s41\ns_mov_b32 s42, s43")
    block(3, 1, [0, 1, 2], 0, pre=sw, rd=False)
    block(0, 0, [3], 24, selfrd=True)
    for b in range(1, 4): block(b, b & 1, [(b+3) % 4], 24)
    st0 = list(lg.q)
    k("s_mov_b32 s45, 2")
    k("K3_loop:")
    for b in range(4):
        block(b, b & 1, [(b+3) % 4], 24, pre=(lambda: k("s_cmp_eq_u32 s45, 4\ns_cselect_b32 s35, 0x%x, s35\ns_cselect_b32 s34, 0x%x, s34\ns_cselect_b32 s42, 0x%x, s42" % (BIGOFF, BIGOFF, BIGOFF))) if b == 1 else None)
    assert lg.q == st0
    k("s_add_u32 s45, s45, 1\ns_cmp_lt_u32 s45, 5\ns_cbranch_scc1 K3_loop")
    st()
    srd(k, 24, 26, 2048*1024*2)
    for lp in range(1, 4):
        k("s_add_u32 s55, s52, %d\ns_and_b32 s55, s55, 3\ns_mul_i32 s55, s55, 24576\ns_add_u32 s55, s55, %d\nv_add_u32 v%d, s55, v%d" % (lp, (lp-1)*8192, 16+lp, VL))
    k("s_mul_i32 s55, s52, 24576\nv_add_u32 v16, s55, v%d" % VL)
    k("s_lshl_b32 s55, s2, 2\ns_add_u32 s55, s55, s52\ns_lshl_b32 s55, s55, 13\ns_add_u32 s56, s55, 0x%x\ns_xor_b32 s55, s55, 0x8000\ns_add_u32 s57, s55, 0x%x\ns_add_u32 s58, s56, 4096\ns_add_u32 s59, s57, 4096" % (WS_XCH, WS_XCH))
    k("s_xor_b32 s55, s33, 1024\ns_and_b32 s63, s2, 31\ns_xor_b32 s63, s63, 1\ns_lshl_b32 s63, s63, 10\ns_lshl_b32 s55, s54, 7\ns_add_u32 s63, s63, s55\nv_mov_b32 v1, s63\ns_mov_b32 s49, 0x%x" % (WS_FLAG + 5*0x8000))
    def writes(r):
        for lp in range(1, 4):
            for t in range(8): k("ds_write_b128 v%d, %s offset:%d" % (16+lp, vr(acc(2*lp + (t >> 2), 4*r + (t & 3)), 4, "a"), t*1024))
    def reads(base):
        for n in range(24): k("ds_read_b128 %s, v16 offset:%d" % (vr(base + 4*n), n*1024))
    def own(r, dst):
        for t in range(8):
            for n in range(4): k("v_accvgpr_read_b32 v%d, a%d" % (dst + 4*t + n, acc(t >> 2, 4*r + (t & 3)) + n))
    def adds(dst, base):
        for s_ in range(3):
            for r in range(0, 32, 2): k("v_pk_add_f32 v[%d:%d], v[%d:%d], v[%d:%d]" % (dst+r, dst+r+1, dst+r, dst+r+1, base+32*s_+r, base+32*s_+r+1))
    k("s_waitcnt vmcnt(0) lgkmcnt(0)\ns_barrier")
    if st.fine == "op": st()
    writes(0); own(0, 32)
    k("s_waitcnt lgkmcnt(0)\ns_barrier")
    if st.fine == "op": st()
    reads(64); own(1, 160)
    for s_ in range(3):
        k("s_waitcnt lgkmcnt(%d)" % min(15, 16 - 8*s_))
        for r in range(0, 32, 2): k("v_pk_add_f32 v[%d:%d], v[%d:%d], v[%d:%d]" % (32+r, 33+r, 32+r, 33+r, 64+32*s_+r, 65+32*s_+r))
    for t in range(8): k("buffer_store_dwordx4 %s, v%d, s[20:23], s%d offen offset:%d sc1" % (vr(32 + 4*t), VL, 56 if t < 4 else 58, (t & 3)*1024))
    k("s_barrier")
    if st.fine == "op": st()
    writes(1)
    k("s_waitcnt lgkmcnt(0)\ns_barrier")
    if st.fine == "op": st()
    reads(64)
    k("s_waitcnt vmcnt(0)\ns_barrier")
    for x in k2.flag_store(5): k(x)
    st()
    k("s_lshl_b32 s55, s60, 18\ns_lshl_b32 s56, s52, 16\ns_add_u32 s55, s55, s56\ns_lshl_b32 s56, s61, 8\ns_add_u32 s55, s55, s56\ns_lshl_b32 s56, s62, 7\ns_add_u32 s55, s55, s56\ns_add_u32 s56, s55, 0x8000")
    k("v_and_b32 v5, 15, v2\nv_lshlrev_b32 v5, 11, v5\nv_lshrrev_b32 v13, 4, v2\nv_lshl_add_u32 v4, v13, 4, v5")
    k(poll)
    k("s_waitcnt lgkmcnt(0)")
    adds(160, 64)
    k("s_waitcnt vmcnt(0)")
    k2.poll_check(k, cx, "K3_spin2", 13, poll, 30)
    st()
    for t in range(8): k("buffer_load_dwordx4 %s, v%d, s[20:23], s%d offen offset:%d sc1" % (vr(64 + 4*t), VL, 57 if t < 4 else 59, (t & 3)*1024))
    for q in range(4):
        b = 160 + 8*q
        k("s_waitcnt vmcnt(%d)" % (6 - 2*q + q))
        for r in range(0, 8, 2): k("v_pk_add_f32 v[%d:%d], v[%d:%d], v[%d:%d]" % (b+r, b+r+1, b+r, b+r+1, 64+8*q+r, 65+8*q+r))
        for n in range(4): k("v_cvt_pk_bf16_f32 v%d, v%d, v%d" % (b+n, b+2*n, b+2*n+1))
        k("buffer_store_dwordx4 %s, v4, s[24:27], s%d offen offset:%d" % (vr(b), 55 + (q >> 1), (q & 1)*64))
    st()
    if st.on: k("s_waitcnt vmcnt(0)")
    st()
```

```python
from common import *
from k1 import alloc, micro, merge
import k2, k3g

XD, WD, XD2, WD2, XA, WA, WB, WA2, WB2 = 8, 16, 24, 32, 40, 42, 46, 48, 52
VPF1, VPF2, VK, VV, VFLAG, VPOLL = 54, 55, 56, 57, 58, 59
XF, WF = 64, 96
WPHI = 224
NWB = 8
def acc1(nt, mt): return ("v", 64 + (nt*4+mt)*4) if nt < 12 else ("a", ((nt-12)*4+mt)*4)
P2V = {8: 80, 9: 112, 10: 144, 11: 176}
def acc2(nt, mt):
    if nt in P2V: return ("v", P2V[nt] + 4*mt)
    n = nt if nt < 8 else nt - 4
    return ("a", n*16 + 4*mt) if n < 4 else ("a", 128 + (n-4)*16 + 4*mt)
def rs(t): return vr(t[1], 4, t[0])

def w_read(part, q, hb, slot):
    NT = 16 if part == 1 else 14
    ks, nt = divmod(q, NT)
    so = 32768 if slot == 1 else 0
    if part == 1 or nt < 8:
        return (WA2 if slot == 2 else WA) + (nt & 3), so + (nt >> 2)*8192 + ks*4096 + hb*512
    cg, seg = divmod(nt-8, 2)
    return (WB2 if slot == 2 else WB) + seg, so + ks*8192 + cg*1024 + hb*256

NT_W = ['']
NT_X = ['']
def dma_ops(j):
    part = 1 if j < 8 else 2; kk = j if j < 8 else j - 8
    slot = 0x10000 + (j % 3)*0x8000
    srdA, srdB, srdX = (12, 12, 8) if part == 1 else (16, 24, 28)
    xd, wd = (XD, WD) if part == 1 else (XD2, WD2)
    offA, offB = (41, 42) if part == 1 else (43, 44)
    W = []
    nb = 4 if part == 1 else 3
    for n in range(4 + nb):
        t = ""
        if n == 0: t += "s_add_u32 m0, s%d, 0x%x\ns_mov_b32 s34, 0x%x\n" % (offA, slot, kk*0x80000)
        if n == 4:
            t += "s_add_u32 m0, s%d, 0x%x\n" % (offB, slot)
            t += "s_nop 0\n" if part == 1 else "s_mov_b32 s35, 0x%x\n" % (kk*0x60000)
        s = srdA if n < 4 else srdB
        t += "buffer_load_dwordx4 v%d, s[%d:%d], s%d offen offset:%d %slds" % (wd+n, s, s+3, 34 if (n < 4 or part == 1) else 35, (n % 4)*1024, NT_W[0])
        W.append(t)
    X = []
    for n in range(8):
        t = ""
        if n % 4 == 0: t += "s_add_u32 m0, s46, %d\n" % ((j & 1)*8192 + n*1024) + ("s_movk_i32 s33, %d\n" % (kk*128) if n == 0 else "s_nop 0\n")
        t += "buffer_load_dwordx4 v%d, s[%d:%d], s33 offen offset:%d %slds" % (xd+n, srdX, srdX+3, (n % 4)*1024, NT_X[0])
        X.append(t)
    return W, X
def nvm(texts): return sum(l.startswith(("buffer", "global")) for t in texts for l in t.split("\n"))

def pstep(k, lg, j, fbase, head=(), after_bar=None, vm_extra=0, valu=(), spread=(), hgap=4, late=(), lategap=4):
    part = 1 if j < 8 else 2; last = j == 23
    npart = 1 if j+1 < 8 else 2
    NT = 16 if part == 1 else 14
    NF = 2*NT; NG = 4*NF; D = 6; par = j & 1
    accf = acc1 if part == 1 else acc2
    first = j in (0, 8)
    def wrd(p, q, slot, fb, tagpre, e, dl):
        out = []
        buf = WF + 4*((fb+q) % NWB)
        for hb in range(2):
            a, imm = w_read(p, q, hb, slot)
            out.append(("lds", "ds_read_b64_tr_b16 a[%d:%d], v%d offset:%d" % (buf+2*hb, buf+2*hb+1, a, imm), (tagpre, "W", q), e + 2*hb, dl))
        return out
    def xrd(ks, mt, slot, tagpre, e, dl):
        b = XF + 16*ks + 4*mt
        return ("lds", "ds_read_b128 a[%d:%d], v%d offset:%d" % (b, b+3, XA+ks, slot*8192 + mt*2048), (tagpre, "X", ks, mt), e, dl)
    bar = 4*(NF-4)
    sW = []
    for q in range(NF - D): sW += wrd(part, q+D, j % 3, fbase, "c", 4*q, 4*q+5)
    sX = [xrd(1, mt, par, "c", 4*(2+mt)+1, 4*NT-12) for mt in range(4)]
    sD = []; nv = 0
    h1 = 1 + hgap*len(head)
    if head: sD += micro(list(head), 1, h1, bar-1); nv += nvm(head)
    if j + 2 < 24:
        wd, xd = dma_ops(j+2)
        sD += micro(wd, max(3, h1), max(4*NT-2, h1+2*len(wd)), bar-1) + micro(xd, max(4*NT+3, h1+2*len(wd)), bar-4-lategap*len(late), bar-1); nv += nvm(wd) + nvm(xd)
    if late: sD += micro(list(late), bar-2-lategap*len(late), bar-2, bar-1); nv += nvm(late)
    reserve = {g: 1 for g in range(7, NG, 8)}
    if not last:
        nxt = wrd(npart, 0, (j+1) % 3, fbase+NF, "n", bar, NG-1) + [xrd(0, mt, 1-par, "n", bar, NG-1) for mt in range(4)]
        for q in range(1, D): nxt += wrd(npart, q, (j+1) % 3, fbase+NF, "n", bar + (0 if q < 4 else 4*(q-3)), NG-1)
        nxt = [(x[0], x[1], x[2], max(bar, x[3] - (2 if x[3] > bar and x[3] % 4 == 2 else 0)), x[4]) for x in nxt]
        sW += nxt
        reserve[bar-1] = 2
    sV = micro(list(valu), 2, NG-2, NG-1) if valu else []
    sS = micro(list(spread), 5, bar-3, bar-1) if spread else []
    nv += nvm(valu) + nvm(spread)
    fill = alloc(NG, [sW, sX, sD, sS, sV], reserve)
    for g in range(NG):
        q, mt = divmod(g, 4); ks, nt = divmod(q, NT)
        if g == bar and not last:
            k("s_waitcnt lgkmcnt(0) vmcnt(%d)\ns_barrier" % (nv + vm_extra)); lg.drain()
            if after_bar: after_bar()
        if g % 8 == 0:
            nd = {("c", "W", q), ("c", "W", q+1)}
            for qq in (q, q+1):
                if qq % NT == 0: nd |= {("c", "X", qq // NT, m) for m in range(4)}
            w = lg.need(nd)
            if w: k(w)
        assert lg.need({("c", "W", q), ("c", "X", ks, mt)}) is None
        wf = vr(WF + 4*((fbase+q) % NWB), 4, "a"); xf = vr(XF + 16*ks + 4*mt, 4, "a")
        vtype = (part == 1 and nt >= 8) or (part == 2 and nt >= 12)
        A, B = (xf, wf) if vtype else (wf, xf)
        C = "0" if (first and ks == 0) else rs(accf(nt, mt))
        k("v_mfma_f32_16x16x32_bf16 %s, %s, %s, %s" % (rs(accf(nt, mt)), A, B, C))
        for f in fill[g]:
            k(f[1])
            if f[0] == "lds": lg.issue(f[2])
    lg.q = [("c",)+t[1:] for t in lg.q]
    return fbase + NF

def pack(d, a, b):
    return ["v_cvt_pk_bf16_f32 v%d, v%d, v%d" % (d, a, a+1), "v_cvt_pk_bf16_f32 v%d, v%d, v%d" % (d+1, a+2, a+3),
            "v_cvt_pk_bf16_f32 v%d, v%d, v%d" % (d+2, b, b+1), "v_cvt_pk_bf16_f32 v%d, v%d, v%d" % (d+3, b+2, b+3)]

def red4(a, b, c, d, t, op):
    return ["v_permlane16_swap_b32 v%d, v%d" % (a, b), "v_permlane16_swap_b32 v%d, v%d" % (c, d),
            "%s v%d, v%d, v%d" % (op, a, a, b), "%s v%d, v%d, v%d" % (op, c, c, d),
            "v_permlane32_swap_b32 v%d, v%d" % (a, c), "%s v%d, v%d, v%d" % (op, a, a, c),
            "v_mov_b32 v%d, v%d" % (c, a), "v_permlane32_swap_b32 v%d, v%d" % (a, c),
            "v_mov_b32 v%d, v%d" % (b, a), "v_mov_b32 v%d, v%d" % (d, c),
            "v_permlane16_swap_b32 v%d, v%d" % (a, b), "v_permlane16_swap_b32 v%d, v%d" % (c, d)]

def softmax2(P0, P1, T):
    st = [T, T+1, T+2, T+3]; E = [T+4, T+12]; L = []
    def both(fn):
        return merge(fn(P0, E[0], st[0], st[1]), fn(P1, E[1], st[2], st[3]))
    L += both(lambda P, e, mx, nm: ["v_max3_f32 v%d, v%d, v%d, v%d" % (mx, P, P+1, P+2), "v_max3_f32 v%d, -v%d, -v%d, -v%d" % (nm, P, P+1, P+2),
                                    "v_max3_f32 v%d, v%d, v%d, v%d" % (mx, mx, P+3, P+4), "v_max3_f32 v%d, v%d, -v%d, -v%d" % (nm, nm, P+3, P+4),
                                    "v_max3_f32 v%d, v%d, v%d, v%d" % (mx, mx, P+5, P+6), "v_max3_f32 v%d, v%d, -v%d, -v%d" % (nm, nm, P+5, P+6),
                                    "v_max_f32 v%d, v%d, v%d" % (mx, mx, P+7), "v_max_f32_e64 v%d, v%d, -v%d" % (nm, nm, P+7)])
    L += red4(*st, None, "v_max_f32")
    L += ["v_pk_mul_f32 v[%d:%d], v[%d:%d], s[50:51]" % (T, T+1, T, T+1), "v_pk_mul_f32 v[%d:%d], v[%d:%d], s[50:51]" % (T+2, T+3, T+2, T+3)]
    def fm(P, e, mx, nm):
        o = []
        for j in range(0, 8, 2):
            o.append("v_pk_fma_f32 v[%d:%d], v[%d:%d], s[50:51], v[%d:%d] op_sel:[0,0,1] op_sel_hi:[1,1,1] neg_lo:[1,0,1] neg_hi:[1,0,1]" % (e+j, e+j+1, P+j, P+j+1, mx, nm))
            o.append("v_pk_fma_f32 v[%d:%d], v[%d:%d], s[50:51], v[%d:%d] op_sel_hi:[1,1,0] neg_lo:[0,0,1] neg_hi:[0,0,1]" % (P+j, P+j+1, P+j, P+j+1, mx, nm))
        return o
    L += both(fm)
    L += both(lambda P, e, mx, nm: [x for j in range(8) for x in ("v_exp_f32 v%d, v%d" % (e+j, e+j), "v_exp_f32 v%d, v%d" % (P+j, P+j))])
    S0, S1 = T+20, T+24
    def sm(P, e, mx, nm):
        s = S0 if P == P0 else S1
        o = ["v_pk_add_f32 v[%d:%d], v[%d:%d], v[%d:%d]" % (s, s+1, P, P+1, P+2, P+3), "v_pk_add_f32 v[%d:%d], v[%d:%d], v[%d:%d]" % (s+2, s+3, e, e+1, e+2, e+3)]
        for j in (4, 6):
            o += ["v_pk_add_f32 v[%d:%d], v[%d:%d], v[%d:%d]" % (s, s+1, s, s+1, P+j, P+j+1), "v_pk_add_f32 v[%d:%d], v[%d:%d], v[%d:%d]" % (s+2, s+3, s+2, s+3, e+j, e+j+1)]
        o += ["v_add_f32 v%d, v%d, v%d" % (mx, s, s+1), "v_add_f32 v%d, v%d, v%d" % (nm, s+2, s+3)]
        return o
    L += both(sm)
    L += red4(*st, None, "v_add_f32")
    L += ["v_rcp_f32 v%d, v%d" % (x, x) for x in st]
    def nr(P, e, mx, nm):
        o = []
        for j in range(0, 8, 2):
            o.append("v_pk_mul_f32 v[%d:%d], v[%d:%d], v[%d:%d] op_sel_hi:[1,0]" % (P+j, P+j+1, P+j, P+j+1, mx, nm))
            o.append("v_pk_mul_f32 v[%d:%d], v[%d:%d], v[%d:%d] op_sel:[0,1] op_sel_hi:[1,1]" % (e+j, e+j+1, e+j, e+j+1, mx, nm))
        return o + pack(P, P, P+4) + pack(P+4, e, e+4)
    L += both(nr)
    return L

def spin(k, cx, name, vres, vexp, reload_text):
    k("v_cmp_gt_u32 vcc, v%d, v%d\ns_cbranch_vccnz %s\n%s_b:" % (vexp, vres, name, name))
    body = ["s_mov_b32 s88, 0", "%s_l:" % name, "s_sleep 4", reload_text, "s_waitcnt vmcnt(0)"]
    return body

def gen(name="f12_kernel", stamps=False, codebytes=98304, fine=None, stsc="sc1", nst=3, pf1=False, pfs=(2,3,4,4,5,6,7,7), coop=0, coopfirst=True, latepf=True, latest=False, cpf=True, pro2=True, gsteps=(4,5), att={}, ntw=False, ntx=False, pfnt=False):
    NT_W[0] = "nt " if ntw else ""; NT_X[0] = "nt " if ntx else ""
    k = K(name, vgpr=512, accum=256, sgpr=102)
    cx = k2.Ctx(k)
    k("s_cmp_ge_u32 s2, 256\ns_cbranch_scc1 F_end")
    st = Stamps(k, stamps, 6); st.fine = fine
    if stamps: k("v_mov_b32 v7, 0")
    st()
    k("s_load_dwordx4 s[4:7], s[0:1], 40")
    k("s_load_dwordx4 s[60:63], s[0:1], 56")
    k("s_load_dwordx2 s[72:73], s[0:1], 0")
    k("s_load_dwordx4 s[76:79], s[0:1], 8")
    k("s_load_dwordx2 s[64:65], s[0:1], 80")
    k("s_load_dwordx4 s[68:71], s[0:1], 96")
    k("s_load_dwordx2 s[96:97], s[0:1], 88")
    k("s_load_dwordx2 s[80:81], s[0:1], 24\ns_load_dwordx2 s[82:83], s[0:1], 72")
    k("s_getpc_b64 s[90:91]\nF_pc:\ns_lshr_b32 s45, s2, 3")
    for x in k2.codepf("F_pc", 4, 61, 118): k(x)
    k("v_lshrrev_b32 v1, 6, v0\nv_and_b32 v2, 63, v0")
    k("v_readfirstlane_b32 s52, v1")
    k("s_and_b32 s53, s2, 31\ns_lshr_b32 s54, s2, 5\ns_sub_u32 s55, 15, s54")
    k("v_lshrrev_b32 v3, 3, v2\nv_and_b32 v4, 7, v2")
    k("s_lshl_b32 s56, s54, 2\ns_add_u32 s56, s56, s52\ns_lshl_b32 s57, s55, 2\ns_add_u32 s57, s57, s52")
    k("v_lshrrev_b32 v60, 1, v3\nv_xor_b32 v60, v60, v4\nv_xor_b32 v117, 4, v60\nv_lshlrev_b32 v60, 4, v60\nv_lshlrev_b32 v117, 4, v117")
    k("v_and_b32 v62, 2, v3\nv_xor_b32 v62, v62, v4\nv_xor_b32 v63, 4, v62\nv_lshlrev_b32 v62, 4, v62\nv_lshlrev_b32 v63, 4, v63")
    k("v_lshl_add_u32 v62, v3, 13, v62\nv_lshl_add_u32 v63, v3, 13, v63")
    def xoffs(dst, sh, perm):
        k("v_lshl_add_u32 v4, v3, %d, v60\nv_lshl_add_u32 v5, v3, %d, v117" % (sh, sh))
        k("s_lshl_b32 s58, s56, %d\ns_lshl_b32 s59, s57, %d" % (sh+5, sh+5))
        for p in range(8):
            k("s_add_u32 s66, s%d, %d\nv_add_u32 v%d, s66, v%d" % (58 if p < 4 else 59, (8*perm[p & 3] << sh) - (p & 3)*1024, dst+p, 4 + (p & 1)))
    xoffs(XD, 10, [0, 2, 1, 3])
    k("s_lshl_b32 s58, s53, 8\ns_and_b32 s59, s52, 1\ns_lshl_b32 s66, s59, 7\ns_add_u32 s66, s66, s58")
    for kg in range(8):
        k("s_add_u32 s67, s66, %d\nv_add_u32 v%d, s67, v%d" % (kg*65536 - (kg & 3)*1024, WD+kg, 62 + (kg & 1)))
    k("s_lshl_b32 s46, s52, 14\ns_lshl_b32 s41, s52, 13\ns_add_u32 s42, s41, 4096\ns_lshl_b32 s43, s52, 12\ns_add_u32 s44, s43, 16384")
    k("s_waitcnt lgkmcnt(0)")
    if fine == "pro": st()
    srd(k, 8, 4, 2048*512*2)
    k("s_cmp_lt_u32 s52, 2\ns_cselect_b32 s12, s60, s62\ns_cselect_b32 s13, s61, s63\ns_and_b32 s13, s13, 0xffff\ns_mov_b32 s14, 0x400000\ns_mov_b32 s15, 0x20000")
    def coop_pf():
        if not coop: return
        k("s_lshr_b32 s58, s2, 3\ns_lshl_b32 s59, s58, 2\ns_add_u32 s59, s59, s52\ns_lshl_b32 s59, s59, 14")
        k("v_lshrrev_b32 v119, 2, v2\nv_lshlrev_b32 v119, 10, v119\nv_and_b32 v120, 3, v2\nv_lshl_add_u32 v119, v120, 7, v119")
        k("buffer_load_dword v118, v119, s[8:11], s59 offen")
        if coop == 8: k("buffer_load_dword v118, v119, s[8:11], s59 offen offset:512")
        k("s_lshl_b32 s58, s58, 1\ns_and_b32 s59, s52, 1\ns_add_u32 s58, s58, s59\ns_mul_i32 s58, s58, %d\ns_and_b32 s59, s2, 7\ns_lshl_b32 s59, s59, 8\ns_add_u32 s58, s58, s59" % (coop*8192))
        k("v_lshrrev_b32 v119, 3, v2\nv_lshlrev_b32 v119, 13, v119\nv_bfe_u32 v120, v2, 1, 2\nv_lshl_add_u32 v119, v120, 11, v119\nv_and_b32 v120, 1, v2\nv_lshl_add_u32 v119, v120, 7, v119")
        if coop == 4: k("v_cmp_gt_u32 vcc, 32, v2\nv_mov_b32 v120, 0x%x\ns_nop 0\nv_cndmask_b32 v119, v120, v119, vcc" % BIGOFF)
        k("buffer_load_dword v118, v119, s[12:15], s58 offen")
    if coopfirst: coop_pf()
    wd, xd = dma_ops(0)
    for t in wd + xd: k(t)
    if not coopfirst: coop_pf()
    if pro2:
        wd, xd = dma_ops(1)
        for t in wd + xd: k(t)
    if fine == "pro": st()
    srd(k, 16, 6, 8 << 20); srd(k, 24, 76, 6 << 20); srd(k, 28, 72, 4 << 20); srd(k, 20, 70, WS_BYTES); srd(k, 36, 68, 256)
    srd(k, 60, 64, 2048); srd(k, 72, 78, 32*32*32*2)
    k("s_lshl_b32 s58, s53, 3\ns_lshl_b32 s59, s52, 1\ns_add_u32 s58, s58, s59\ns_cmp_lt_u32 s58, 128\ns_cselect_b32 s59, s54, s55\ns_lshl_b32 s59, s59, 7\ns_and_b32 s58, s58, 127\ns_add_u32 s58, s58, s59")
    k("s_lshl_b32 s76, s58, 2\ns_add_u32 s76, s76, 0x%x\ns_lshl_b32 s58, s58, 11\ns_add_u32 s59, s58, 2048" % WS_G)
    k("s_mov_b32 s77, s58\ns_mov_b32 s78, s59")
    gload = ["buffer_load_dwordx4 a[128:131], v61, s[28:31], s77 offen", "buffer_load_dwordx4 a[132:135], v61, s[28:31], s77 offen offset:16",
             "buffer_load_dwordx4 a[136:139], v61, s[28:31], s78 offen", "buffer_load_dwordx4 a[140:143], v61, s[28:31], s78 offen offset:16",
             "buffer_load_dwordx4 a[144:147], v61, s[60:63], 0 offen", "buffer_load_dwordx4 a[148:151], v61, s[60:63], 0 offen offset:16"]
    J, G_, R_, C_ = 104, 105, 106, 107
    k("v_and_b32 v%d, 15, v2\nv_lshrrev_b32 v%d, 4, v2\nv_bfe_u32 v%d, v2, 2, 2\nv_and_b32 v%d, 3, v2" % (J, G_, R_, C_))
    k("v_lshrrev_b32 v108, 1, v%d\nv_and_b32 v109, 1, v%d" % (G_, G_))
    k("v_lshlrev_b32 v110, 10, v108\nv_lshl_add_u32 v110, v109, 8, v110\nv_lshl_add_u32 v110, v%d, 1, v110\ns_lshl_b32 s79, s53, 11" % J)
    pload = ["buffer_load_ushort a%d, v59, s[72:75], s79 offen offset:%d" % (152+ft*8+s_, (8*(s_ >> 2) + (s_ & 3))*64 + ft*32) for ft in range(2) for s_ in range(8)]
    xoffs(XD2, 11, [0, 1, 2, 3])
    k("s_lshl_b32 s58, s53, 8\ns_and_b32 s59, s52, 1\ns_lshr_b32 s66, s52, 1\ns_lshl_b32 s66, s66, 7\ns_add_u32 s66, s66, s58\ns_lshl_b32 s59, s59, 18\ns_add_u32 s66, s66, s59")
    for p in range(4):
        k("s_add_u32 s67, s66, %d\nv_add_u32 v%d, s67, v%d" % (p*65536 - p*1024, WD2+p, 62 + (p & 1)))
    k("v_lshrrev_b32 v111, 2, v2\nv_lshrrev_b32 v112, 5, v2\nv_xor_b32 v112, v112, v%d\nv_lshlrev_b32 v112, 4, v112" % C_)
    k("s_movk_i32 s67, 6144\nv_mad_u32_u24 v111, v111, s67, v112")
    k("s_mul_i32 s66, s52, %d\ns_lshl_b32 s67, s53, 6\ns_add_u32 s66, s66, s67" % (16*6144))
    for cg in range(3):
        k("s_add_u32 s67, s66, %d\nv_add_u32 v%d, s67, v111" % (cg*1024, WD2+4+cg))
    k("v_lshrrev_b32 v111, 1, v%d\nv_xor_b32 v111, v111, v%d\nv_xor_b32 v112, 4, v111\nv_lshlrev_b32 v113, 7, v%d\nv_add_u32 v113, s46, v113" % (J, G_, J))
    k("v_lshl_add_u32 v%d, v111, 4, v113\nv_lshl_add_u32 v%d, v112, 4, v113" % (XA, XA+1))
    k("v_lshrrev_b32 v111, 1, v%d\nv_lshl_or_b32 v111, v109, 1, v111" % R_)
    k("v_lshlrev_b32 v113, 10, v%d\nv_lshl_add_u32 v113, v%d, 7, v113\nv_lshl_add_u32 v113, v%d, 3, v113\nv_add_u32 v113, 0x10000, v113" % (G_, R_, C_))
    for seg in range(4):
        k("v_xor_b32 v112, %d, v111\nv_lshl_add_u32 v%d, v112, 5, v113\nv_add_u32 v%d, 0x10000, v%d" % (seg, WA+seg, WA2+seg, WA+seg))
    k("v_lshlrev_b32 v113, 12, v108\nv_lshl_add_u32 v113, v109, 9, v113\nv_lshl_add_u32 v113, v%d, 6, v113" % R_)
    k("v_and_b32 v111, 1, v%d\nv_lshl_add_u32 v113, v111, 3, v113\nv_add_u32 v113, 0x14000, v113\nv_and_b32 v111, 2, v%d\nv_xor_b32 v111, v111, v109" % (C_, C_))
    k("v_lshl_add_u32 v%d, v111, 4, v113\nv_xor_b32 v111, 1, v111\nv_lshl_add_u32 v%d, v111, 4, v113" % (WB, WB+1))
    k("v_add_u32 v%d, 0x10000, v%d\nv_add_u32 v%d, 0x10000, v%d" % (WB2, WB, WB2+1, WB+1))
    k("s_lshl_b32 s58, s2, 2\ns_add_u32 s58, s58, s52\ns_lshl_b32 s59, s58, 10\ns_mul_i32 s58, s58, 768\nv_lshlrev_b32 v111, 7, v2\nv_mov_b32 v112, 0x%x" % BIGOFF)
    k("v_add_u32 v%d, s59, v111\nv_add_u32 v%d, s58, v111\nv_cmp_gt_u32 vcc, 8, v2\nv_cmp_gt_u32 s[66:67], 6, v2" % (VPF1, VPF2))
    k("v_cndmask_b32 v%d, v112, v%d, vcc\nv_cndmask_b32 v%d, v112, v%d, s[66:67]" % (VPF1, VPF1, VPF2, VPF2))
    k("v_lshlrev_b32 v111, 7, v2\ns_lshl_b32 s58, s53, 10\nv_add_u32 v1, s58, v111\nv_subrev_u32 v111, 8, v2\nv_lshlrev_b32 v111, 10, v111\ns_lshl_b32 s59, s54, 7\nv_add_u32 v111, s59, v111\nv_add_u32 v111, 0x20000, v111")
    k("v_cmp_gt_u32 vcc, 8, v2\ns_add_u32 s58, s58, s59\ns_cmp_eq_u32 s52, 0\nv_cndmask_b32 v1, v111, v1, vcc\ns_cselect_b32 s58, s58, 0x%x\ns_cselect_b32 s66, 0, 0x%x" % (BIGOFF, BIGOFF))
    k("v_cmp_gt_u32 vcc, 40, v2\nv_mov_b32 v%d, v112\nv_mov_b32 v113, v112\nv_cndmask_b32 v1, v112, v1, vcc\nv_writelane_b32 v%d, s58, 0\nv_writelane_b32 v113, s66, 0" % (VFLAG, VFLAG))
    k("s_memrealtime s[58:59]\nv_mov_b32 v61, v113\nv_mov_b32 v63, 0\ns_waitcnt lgkmcnt(0)\ns_or_b32 s89, s58, 1\nv_mov_b32 v62, s89")
    nonce = "buffer_atomic_cmpswap v[62:63], v61, s[36:39], 0 offen sc1"
    k("s_mov_b32 s50, %s\ns_mov_b32 s51, s50" % f32(LOG2E))
    k("v_and_b32 v111, 7, v%d\nv_lshlrev_b32 v%d, 4, v111\nv_lshrrev_b32 v111, 3, v%d\nv_lshl_add_u32 v%d, v111, 8, v%d\nv_lshl_add_u32 v%d, v108, 9, v%d\nv_lshl_add_u32 v%d, v109, 10, v%d" % (J, VK, J, VK, VK, VK, VK, VK, VK))
    k("v_lshlrev_b32 v%d, 4, v%d\nv_lshl_add_u32 v%d, v109, 9, v%d\nv_lshl_add_u32 v%d, v108, 12, v%d" % (VV, J, VV, VV, VV, VV))
    k("s_lshl_b32 s40, s53, 20\ns_lshl_b32 s84, s56, 14\ns_add_u32 s84, s84, s40\ns_lshl_b32 s85, s57, 14\ns_add_u32 s85, s85, s40")
    k("s_add_u32 s86, s84, 4096\ns_add_u32 s87, s85, 4096\ns_add_u32 s47, s84, 8192\ns_add_u32 s48, s85, 8192")
    k("v_cmp_eq_u32 vcc, 63, v2\nv_mov_b32 v3, 0\ns_nop 0\nv_cndmask_b32 v3, v112, v3, vcc")
    k("s_lshl_b32 s58, s2, 1\ns_and_b32 s59, s52, 1\ns_add_u32 s58, s58, s59\ns_mul_i32 s58, s58, 6144\ns_add_u32 s58, s58, 0x100000")
    k("v_lshlrev_b32 v111, 7, v2\nv_add_u32 v4, s58, v111\nv_cmp_gt_u32 vcc, 48, v2\ns_lshl_b32 s58, s2, 13\nv_lshlrev_b32 v5, 5, v0\nv_cndmask_b32 v4, v112, v4, vcc\nv_add_u32 v5, s58, v5")
    p1pf = ["buffer_load_dword v60, v4, s[12:15], 0 offen", "buffer_load_dword v60, v5, s[8:11], 0 offen"]
    k("v_mov_b32 v%d, v110\ns_mov_b32 s32, 0x%x\ns_mov_b32 s49, 0x%x" % (VPOLL, WS_FLAG, WS_FLAG + 0x8000))
    if fine == "pro": st()
    k("s_waitcnt vmcnt(%d)\ns_barrier" % (16 if pro2 else 0))
    lg = Lgkm()
    for q in range(6):
        for hb in range(2):
            a, imm = w_read(1, q, hb, 0)
            k("ds_read_b64_tr_b16 a[%d:%d], v%d offset:%d" % (WF+4*q+2*hb, WF+4*q+2*hb+1, a, imm)); lg.issue(("c", "W", q))
        if q == 0:
            for mt in range(4):
                k("ds_read_b128 a[%d:%d], v%d offset:%d" % (XF+4*mt, XF+4*mt+3, XA, mt*2048)); lg.issue(("c", "X", 0, mt))
    gate = []
    for n in range(8):
        gate += ["v_accvgpr_read_b32 v61, a%d" % (152+2*n), "v_accvgpr_read_b32 v62, a%d" % (153+2*n), "v_lshl_or_b32 v61, v62, 16, v61", "v_accvgpr_write_b32 a%d, v61" % (WPHI+n)]
    gate += ["v_mov_b32 v4, 0", "v_mov_b32 v5, 0"]
    for n in range(8):
        gate += ["v_accvgpr_read_b32 v61, a%d" % (144+n), "v_accvgpr_read_b32 v62, a%d" % (128+n), "v_accvgpr_read_b32 v63, a%d" % (136+n),
                 "v_dot2_f32_bf16 v4, v62, v61, v4", "v_dot2_f32_bf16 v5, v63, v61, v5"]
    gate2 = []
    for sh in ("row_shr:1", "row_shr:2", "row_shr:4", "row_shr:8"):
        gate2 += ["v_add_f32_dpp v%d, v%d, v%d %s row_mask:0xf bank_mask:0xf bound_ctrl:0" % (r, r, r, sh) for r in (4, 5)]
    gate2 += ["v_add_f32_dpp v%d, v%d, v%d row_bcast:15 row_mask:0xa bank_mask:0xf" % (r, r, r) for r in (4, 5)]
    gate2 += ["v_add_f32_dpp v%d, v%d, v%d row_bcast:31 row_mask:0xc bank_mask:0xf" % (r, r, r) for r in (4, 5)]
    gate2 += ["v_mul_f32 v4, s50, v4", "v_mul_f32 v5, s50, v5", "v_exp_f32 v4, -v4", "v_exp_f32 v5, -v5", "v_add_f32 v4, 1.0, v4", "v_add_f32 v5, 1.0, v5", "v_rcp_f32 v4, v4", "v_rcp_f32 v5, v5"]
    st()
    fb = 0; prevlate = 0
    stores = []
    for j in range(24):
        head = []; ab = None; spread = []; valu = []; hgap = 4; vx = 0
        k("F_step%d:" % j)
        if j == 0:
            wd, xd = dma_ops(1)
            if pro2: head = [nonce]
            else:
                head = wd + xd + (p1pf if pf1 else []) + [nonce]; hgap = 2
                vx = -(16)
        pfl = []
        for r in range(8):
            if pfs[r] == j:
                pfl += ["s_mov_b32 s66, 0x%x\nbuffer_load_dword v60, v%d, s[16:19], s66 offen" % (r << 20, VPF1), "s_mov_b32 s67, 0x%x\nbuffer_load_dword v60, v%d, s[24:27], s67 offen" % (r*786432, VPF2)]
        late = []
        if latepf: late += pfl; pfl = []
        if cpf and j in (3, 7, 11, 15): late.append("\n".join(k2.codepf("F_step%d" % (j+4), 2, 5 if j > 6 else 63, 60)))
        if cpf and j == 19: late.append("\n".join(k2.codepf("F_e2", 8, 5, 60)))
        spread += pfl
        if j == 1: spread = ["v_lshlrev_b32 v61, 5, v2"] + gload + spread
        if j == 2: head = ["buffer_load_dword v62, off, s[36:39], 0 sc1"]
        if j == 2: spread += pload
        if j == 4: valu = ["v_readfirstlane_b32 s89, v62"] + gate[32:]
        if j == 5: valu = gate2 + (gate[:32] if gsteps == (4, 5) else [])
        if j == 6 and gsteps != (4, 5): valu = gate[:32]
        if j == 6: spread.append("buffer_store_dwordx2 v[4:5], v3, s[20:23], s76 offen sc1")
        if j == 8:
            st()
            for dp in range(4):
                for mt in range(4):
                    a = acc1(2*dp, mt)[1]; b = acc1(2*dp+1, mt)[1]
                    for t in pack(a, a, b): k(t)
                    so = (84 if mt < 2 else 85) if dp < 2 else (86 if mt < 2 else 87)
                    stores.append("buffer_store_dwordx4 %s, v%d, s[20:23], s%d offen offset:%d %s" % (vr(a), VK, so, (dp & 1)*2048 + (mt & 1)*128, stsc))
            for dt in range(8):
                for mp in range(2):
                    f, a = acc1(8+dt, 2*mp); d = a
                    if f == "a":
                        t0 = XD + 8*mp
                        for n in range(8): k("v_accvgpr_read_b32 v%d, a%d" % (t0+n, a+n))
                        a = t0; d = acc1(4+dt, 2*mp+1)[1]
                    for t in pack(d, a, a+4): k(t)
                    stores.append("buffer_store_dwordx4 %s, v%d, s[20:23], s%d offen offset:%d %s" % (vr(d), VV, 47+mp, (dt >> 1)*1024 + (dt & 1)*256, stsc))
            st()
        if j >= 8:
            if latest: late += stores[(j-8)*nst:(j-8)*nst+nst]
            else: spread = pfl + stores[(j-8)*nst:(j-8)*nst+nst]
        jsig = 8 + (32+nst-1)//nst + (1 if latest else 0)
        if j == 7:
            def ab():
                k("v_mov_b32 v61, s89\ns_mov_b32 s66, 0x%x\nbuffer_store_dword v61, v%d, s[20:23], s66 offen sc1" % (WS_FLAG + 4*0x8000, VFLAG))
        if j == jsig:
            def ab():
                k("v_mov_b32 v60, s89\nbuffer_store_dword v60, v%d, s[20:23], s32 offen sc1" % VFLAG)
        if j == 22:
            head = head + ["buffer_load_dword v%d, v1, s[20:23], s32 offen sc1" % VPOLL]; vx = -1
            def ab():
                k("v_cmp_gt_u32 s[66:67], 0x%x, v1\nv_cmp_ne_u32 vcc, s89, v%d\ns_and_b64 vcc, vcc, s[66:67]\ns_cbranch_vccnz F_spin1\nF_spin1_b:" % (BIGOFF, VPOLL))
        fb = pstep(k, lg, j, fb, head, ab, vm_extra=vx + (j in (8, jsig+1)) + prevlate, valu=valu, spread=spread, hgap=hgap, late=late)
        prevlate = nvm(late)
        if fine == "steps" and j not in (7, 23): st()
    cx.ool.append(("F_spin1", ["s_mov_b32 s88, 0", "F_spin1_l:", "s_sleep 4", "buffer_load_dword v%d, v1, s[20:23], s32 offen sc1" % VPOLL, "s_waitcnt vmcnt(0)",
                               "v_cmp_ne_u32 vcc, s89, v%d" % VPOLL, "s_and_b64 vcc, vcc, s[66:67]", "s_add_u32 s88, s88, 1", "s_cmp_gt_u32 s88, 0x10000", "s_cbranch_scc1 F_spin1_b", "s_cbranch_vccnz F_spin1_l"]))
    st()
    k("F_e2:")
    k("v_readfirstlane_b32 s33, v%d" % VFLAG)
    k("v_lshlrev_b32 v%d, 4, v2\ns_lshl_b32 s41, s52, 12\nv_add_u32 v%d, s41, v%d" % (k2.VLANE16, k2.VDMA, k2.VLANE16))
    k("s_add_u32 s58, s55, 1\ns_lshl_b32 s58, s58, 16\ns_add_u32 s58, s58, s40")
    k("s_mov_b32 s8, s20\ns_mov_b32 s9, s21\ns_mov_b32 s10, s58\ns_mov_b32 s11, 0x20000")
    k("v_and_b32 v3, 31, v2\nv_lshrrev_b32 v4, 5, v2\nv_lshlrev_b32 v5, 2, v3")
    k("s_lshl_b32 s64, s56, 7\ns_lshl_b32 s65, s57, 7\ns_add_u32 s64, s64, 0x%x\ns_add_u32 s65, s65, 0x%x" % (WS_G, WS_G))
    k("s_waitcnt vmcnt(0) lgkmcnt(0)\ns_barrier")
    if fine == "e2": st()
    vq = []
    for u in range(6):
        for n in range(4):
            vq.append(("s_mov_b32 m0, s41\ns_add_u32 s41, s41, 0x4000\n" if n == 0 else "") + "buffer_load_dwordx4 v%d, s[8:11], s40 offen offset:%d lds" % (k2.VDMA, n*1024) + ("\ns_add_u32 s40, s40, 0x4000" if n == 3 else ""))
    vq.append("buffer_load_dword v%d, v5, s[20:23], s64 offen sc1" % k2.G1[0]); vq.append("buffer_load_dword v%d, v5, s[20:23], s65 offen sc1" % k2.G1[1])
    k0 = k; cnt = [0]
    def k(t, every=20):
        for l in t.split("\n"):
            k0(l); cnt[0] += 1
            if cnt[0] % every == 0 and vq and l.startswith("v_"): k0(vq.pop(0))
    for t in range(2):
        for mt in range(4):
            a = acc2(8+2*t, mt)[1]; b = acc2(9+2*t, mt)[1]
            for x in pack(a, a, b): k(x)
    PK, PQ = 96, 160
    for t, base in ((1, PK), (0, PQ)):
        for mt in range(4):
            for ft in range(2):
                k("v_mfma_f32_16x16x32_bf16 %s, %s, %s, 0" % (vr(base + mt*8 + ft*4), vr(WPHI+4*ft, 4, "a"), vr(acc2(8+2*t, mt)[1])))
    if fine == "e2": st()
    k("s_mov_b32 s60, %s\ns_mov_b32 s61, s60" % f32(LOG2E * 128 ** -0.5))
    TQ = 192
    n_ = 0
    for fr in range(2):
        for dp in range(4):
            dst = (k2.QA, k2.QB)[fr] + 8*dp
            for b in range(2):
                mt = 2*fr + b; t = TQ + 8*(n_ % 4); n_ += 1
                for h2 in range(2):
                    a = acc2(2*dp + h2, mt)[1]
                    for n in range(4): k("v_accvgpr_read_b32 v%d, a%d" % (t + 4*h2 + n, a + n))
                for n in range(0, 8, 2): k("v_pk_mul_f32 v[%d:%d], v[%d:%d], s[60:61]" % (t+n, t+n+1, t+n, t+n+1))
                for x in pack(dst + 4*b, t, t+4): k(x)
            if dp or fr:
                pd = prev
                for n in range(4): k("v_permlane16_swap_b32 v%d, v%d" % (pd+n, pd+4+n))
            prev = dst
    st()
    VCH = 128
    SCR = 98304
    k("s_lshl_b32 s62, s52, 12\ns_add_u32 s62, s62, %d\nv_add_u32 v15, s62, v%d" % (SCR, k2.VLANE16))
    for p in range(2):
        for tau in range(2):
            a = acc2(12+tau, 2*p)[1]; t = TQ + 8*((p*2+tau) % 2)
            for n in range(8): k("v_accvgpr_read_b32 v%d, a%d" % (t+n, a+n))
            for x in pack(VCH + (p*2+tau)*4, t, t+4): k(x)
    for n in range(4): k("v_permlane16_swap_b32 v%d, v%d" % (prev+n, prev+4+n))
    for n in range(4): k("ds_write_b128 v15, %s offset:%d" % (vr(VCH + 4*n), n*1024))
    k("v_and_b32 v12, 15, v2\nv_lshrrev_b32 v13, 4, v2\ns_mul_i32 s62, s52, 8704\ns_add_u32 s62, s62, %d\nv_mov_b32 v14, s62\ns_movk_i32 s62, 136" % (SCR + 16384))
    k("v_mad_u32_u24 v12, v12, s62, v14\nv_lshl_add_u32 v12, v13, 3, v12")
    k("s_lshl_b32 s63, s52, 5\ns_add_u32 s63, s63, %d\nv_mov_b32 v14, s63\nv_lshrrev_b32 v13, 2, v2\nv_mad_u32_u24 v13, v13, s62, v14\nv_and_b32 v15, 3, v2\nv_lshl_add_u32 v13, v15, 3, v13" % (SCR + 16384))
    k("v_add_u32 v15, %d, v%d" % (SCR, k2.VLANE16))
    if fine == "e2": st()
    L = merge(softmax2(PK, PK+8, 192), softmax2(PK+16, PK+24, 228))
    for x in L: k(x)
    if fine == "e2": st()
    for m in range(4):
        for sg in range(2):
            for ft in range(2):
                b = PK + 8*m + 4*sg + 2*ft
                k("ds_write_b64 v12, v[%d:%d] offset:%d" % (b, b+1, m*16*136 + sg*64 + ft*32))
    k("v_mov_b32 v144, 0x3f803f80\nv_mov_b32 v145, v144\nv_mov_b32 v146, v144\nv_mov_b32 v147, v144")
    k("s_lshl_b32 s58, s53, 3\ns_add_u32 s58, s58, s54\ns_mul_i32 s58, s58, 12288\ns_mul_i32 s62, s52, 3072\ns_add_u32 s58, s58, s62\ns_add_u32 s58, s58, 0x%x" % WS_KVP)
    L = merge(softmax2(PQ, PQ+8, 192), softmax2(PQ+16, PQ+24, 228))
    e0 = next(n for n, x in enumerate(L) if x.startswith("v_exp")); e1 = e0 + 64
    c0 = next(n for n, x in enumerate(L) if x.startswith("v_pk"))
    for x in L[:c0]: k(x)
    assert not vq
    k = k0
    k("s_waitcnt lgkmcnt(0) vmcnt(18)\ns_barrier")
    if fine == "e2": st()
    lg = Lgkm()
    AFa = 64; KVD = 128
    for p in range(8):
        for hb in range(2):
            b = AFa + 4*p + 2*hb
            k("ds_read_b64_tr_b16 a[%d:%d], v13 offset:%d" % (b, b+1, (32*p+16*hb)*136)); lg.issue(("P", p))
        for c in range(2):
            k("ds_read_b128 %s, v15 offset:%d" % (vr((p*2+c)*4, 4, "a"), (p*2+c)*1024)); lg.issue(("P", p))
    for t, tag in k2.k_reads("dual", k2.VLANE16): k(t); lg.issue(tag)
    for x in L[c0:e0]: k(x)
    mf = []
    for p in range(8):
        for c in range(3):
            d = vr(KVD + 4*c); B = vr((p*2+c)*4, 4, "a") if c < 2 else vr(144)
            mf.append((("P", p), "v_mfma_f32_16x16x32_bf16 %s, %s, %s, %s" % (d, vr(AFa + 4*p, 4, "a"), B, "0" if p == 0 else d), 1))
    for ks in range(8):
        for f in range(2):
            d = vr(k2.S(0, f), 16)
            mf.append((("K", ks), "v_mfma_f32_32x32x16_bf16 %s, %s, %s, %s" % (d, vr(k2.KPOOL[ks], 4, "a"), vr((k2.QA, k2.QB)[f] + 4*ks), "0" if ks == 0 else d), 3))
    ex = L[e0:e1]
    for n, (tag, t, ne) in enumerate(mf):
        w = lg.need({tag})
        if w: k(w)
        k(t)
        for x in ex[:ne]: k(x)
        ex = ex[ne:]
        if n == 30:
            for c in range(3): k("buffer_store_dwordx4 %s, v%d, s[20:23], s58 offen offset:%d sc1" % (vr(KVD + 4*c), k2.VLANE16, c*1024))
    for x in ex + L[e1:]: k(x)
    st()
    k2.attention(k, cx, st, PQ=PQ, op=k3g, cpf=cpf, **att)
    k3g.outproj(k, cx, st)
    st.store(20, 52, 0)
    k("F_end:\ns_endpgm")
    k2.emit_ool(k, cx)
    rep = finish(k)
    return k, rep
```

```python
from common import *

OA, OB = 0, 64
KPOOL = [128 + 4*n for n in range(16)]
VPOOL = [192 + 4*n for n in range(16)]
QA, QB = 16, 48
def S(par, f): return 80 + par*32 + f*16
NEG = [144, 160, 176]
def P(f): return 192 + 8*f
E0 = 208
G1 = [224, 225]; TS = [226, 227]; L = [228, 229]; THR = [230, 231]
VI = [8, 9]; VLANE16 = 10; VDMA = 11; VST = 12
RT = 232
BAR = 22
BIG = 2.0**64

G0 = [-10, 6]
def softmax_sched(par, f):
    s = S(par, f); e = E0 + 8*f; p = P(f); ts = TS[f]; g0 = G0[f]
    ops = []
    for j in range(16): ops.append((g0 + j, "e", "v_exp_f32 v%d, v%d" % (e + j % 8, s + j)))
    for j in range(0, 16, 2):
        a, b = e + j % 8, e + (j+1) % 8
        g = g0 + j + 2
        cv = "v_cvt_pk_bf16_f32 v%d, v%d, v%d" % (p + j//2, a, b)
        if j == 0:
            ops += [(g, "p", "v_add_f32 v%d, v%d, v%d" % (ts, a, b)), (g+1, "p", cv)]
        else:
            ops += [(g, "p", "v_add_f32 v%d, v%d, v%d" % (ts, ts, a)), (g + (j < 14), "p", "v_add_f32 v%d, v%d, v%d" % (ts, ts, b)), (g + (j == 14), "p", cv)]
    ops.append((g0 + 16, "k", "v_cmp_nge_f32 vcc, s39, v%d" % ts))
    ops.sort(key=lambda x: (x[0], {"p": 0, "k": 1, "e": 2}[x[1]]))
    return ops

def prep_list(neg, thr, t0=RT):
    out = []
    for r in range(16):
        kap = 8*(r >> 2) + (r & 3)
        t = t0 + (r % 4)
        out.append("v_add_f32 v%d, %s, v%d" % (t, f32(-kap*BIG), thr))
        out.append("v_min_f32 v%d, v%d, v%d" % (neg + r, neg + r, t))
    return out

def k_reads(kind, vi):
    if kind == "dual":
        return [("ds_read_b128 %s, v%d offset:%d" % (vr(KPOOL[n], 4, "a"), vi, n*1024), ("K", n)) for n in range(8)]
    return [("ds_read_b128 %s, v%d offset:%d" % (vr(KPOOL[n], 4, "a"), vi, (n & 1)*16384 + (n >> 1)*1024), ("K", n)) for n in range(16)]
NTAIL = {"dual": 8, "single": 10}

class Ctx:
    def __init__(self, k): self.k = k; self.rare = []; self.n = 0; self.ool = []

def rowmax(k, s, d, t):
    k("v_max3_f32 v%d, v%d, v%d, v%d" % (d, s, s+1, s+2))
    for j in range(3, 15, 2): k("v_max3_f32 v%d, v%d, v%d, v%d" % (d, d, s+j, s+j+1))
    k("v_max_f32 v%d, v%d, v%d" % (d, d, s+15))
    k("v_mov_b32 v%d, v%d\nv_permlane32_swap_b32 v%d, v%d\nv_max_f32 v%d, v%d, v%d" % (t, d, d, t, d, d, t))

def emit_rare(k, lab, back, par, f, qk, pv, redo):
    k("%s:" % lab)
    k("s_nop 15\ns_nop 15")
    d, t = RT, RT+1
    rowmax(k, S(par, f), d, t)
    k("v_max_f32 v%d, 0, v%d" % (d, d))
    isB = (pv == "single") or f == 1
    adj = [S(par, f)]
    if pv == "single": adj.append(S(par, 1-f))
    if qk == "dual": adj.append(S(1-par, f))
    elif qk == "single" and isB: adj += [S(1-par, 0), S(1-par, 1)]
    if qk != "none": adj += [NEG[1], NEG[2]] if isB else [NEG[0]]
    for b in adj:
        for j in range(16): k("v_sub_f32 v%d, v%d, v%d" % (b+j, b+j, d))
    k("v_exp_f32 v%d, -v%d" % (t, d))
    o = OB if isB else OA; l = L[1 if isB else 0]
    k("s_nop 0\nv_mul_f32 v%d, v%d, v%d" % (l, l, t))
    for j in range(0, 64, 4):
        for n in range(4): k("v_accvgpr_read_b32 v%d, a%d" % (RT+4+n, o+j+n))
        for n in range(4): k("v_mul_f32 v%d, v%d, v%d" % (RT+4+n, RT+4+n, t))
        for n in range(4): k("v_accvgpr_write_b32 a%d, v%d" % (o+j+n, RT+4+n))
    for x in redo: k(x)
    k("s_nop 3\ns_branch %s" % back)

def codepf(label, n, va, vd, sidx=45):
    return ["v_min_u32 v%d, %d, v0" % (va, n-1), "v_mad_u32_u24 v%d, s%d, %d, v%d" % (va, sidx, n, va), "v_lshlrev_b32 v%d, 7, v%d" % (va, va)] + \
           (["v_add_u32 v%d, %s-F_pc, v%d" % (va, label, va)] if label != "F_pc" else []) + ["global_load_dword v%d, v%d, s[90:91]" % (vd, va)]
def flag_store(kind, va=13, vd=5):
    return ["v_mov_b32 v%d, 0x%x" % (va, BIGOFF), "v_writelane_b32 v%d, s33, 0" % va, "v_mov_b32 v%d, s89" % vd, "s_mov_b32 s66, 0x%x" % (WS_FLAG + kind*0x8000),
            "buffer_store_dword v%d, v%d, s[20:23], s66 offen sc1" % (vd, va)]
def poll_check(k, cx, name, vres, poll, mask):
    k("v_cmp_ne_u32 vcc, s89, v%d\ns_and_b64 vcc, vcc, s[%d:%d]\ns_cbranch_vccnz %s\n%s_b:" % (vres, mask, mask+1, name, name))
    cx.ool.append((name, ["s_mov_b32 s88, 0", "%s_l:" % name, "s_sleep 2", poll, "s_waitcnt vmcnt(0)", "v_cmp_ne_u32 vcc, s89, v%d" % vres, "s_and_b64 vcc, vcc, s[%d:%d]" % (mask, mask+1),
                          "s_add_u32 s88, s88, 1", "s_cmp_gt_u32 s88, 0x10000", "s_cbranch_scc1 %s_b" % name, "s_cbranch_vccnz %s_l" % name]))

def step(cx, lg, par, qk, pv, nextqk, prepA=False, prepB=False, extra=None, vmw=8, sig=False, sig2=False, first=False):
    k = cx.k
    mf = []; needs = []
    if qk == "dual":
        for ks in range(8):
            for f in range(2):
                d = vr(S(1-par, f), 16); c = vr(NEG[f], 16) if ks == 0 else d
                mf.append("v_mfma_f32_32x32x16_bf16 %s, %s, %s, %s" % (d, vr(KPOOL[ks], 4, "a"), vr((QA, QB)[f] + 4*ks), c)); needs.append({("K", ks)})
    elif qk == "single":
        for ks in range(8):
            for f in range(2):
                d = vr(S(1-par, f), 16); c = vr(NEG[1+f], 16) if ks == 0 else d
                mf.append("v_mfma_f32_32x32x16_bf16 %s, %s, %s, %s" % (d, vr(KPOOL[2*ks+f], 4, "a"), vr(QB + 4*ks), c)); needs.append({("K", 2*ks+f)})
    else:
        for n in range(16): mf.append(None); needs.append(set())
    for f in range(2):
        for u in range(2):
            for db in range(4):
                n = u*4 + db + (8*f if pv == "single" else 0)
                o = (OB if (pv == "single" or f == 1) else OA) + 16*db
                mf.append("v_mfma_f32_32x32x16_bf16 %s, %s, %s, %s" % (vr(o, 16, "a"), vr(VPOOL[n], 4, "a"), vr(P(f) + 4*u), "0" if (first and u == 0) else vr(o, 16, "a"))); needs.append({("V", n)})
    fill = [[] for _ in range(32)]
    if qk != "none":
        rest = k_reads(qk, VI[1-par])[NTAIL[qk]:]
        for n, (t, tag) in enumerate(rest): fill[n].append(("lds", t, tag))
    nv = 8 if pv == "dual" else 16
    for n in range(nv):
        t = "ds_read_b128 %s, v%d offset:%d" % (vr(VPOOL[n], 4, "a"), VI[par], 8192 + (n >> 3)*16384 + (n & 7)*1024)
        g = (3 + (n*10)//8) if pv == "dual" else (3 + n)
        if qk == "none": g = n if n < 8 else 8 + (n-8)//2
        fill[g].append(("lds", t, ("V", n)))
    if nextqk != "end":
        nd = 4 if pv == "dual" else 8
        for n in range(nd):
            t = ""
            if n % 4 == 0: t = "s_mov_b32 m0, s41\ns_add_u32 s41, s41, 0x4000\ns_and_b32 s41, s41, 0x1ffff\n"
            t += "buffer_load_dwordx4 v%d, s[8:11], s40 offen offset:%d lds" % (VDMA, (n % 4)*1024)
            if n % 4 == 3: t += "\ns_add_u32 s40, s40, 0x4000"
            fill[1 + (n*(BAR-2))//nd].append(("raw", t, None))
    if nextqk in ("dual", "single"):
        fill[BAR-1].append(("raw", "v_add_u32 v%d, s42, v%d\ns_add_u32 s42, s42, 0x%x\ns_and_b32 s42, s42, 0x1ffff" % (VI[par], VLANE16, 0x4000 if nextqk == "dual" else 0x8000), None))
        for n, (t, tag) in enumerate(k_reads(nextqk, VI[par])[:NTAIL[nextqk]]): fill[BAR+n].append(("lds", t, ("n",)+tag))
    for f in range(2):
        for (g, kind, t) in softmax_sched(par, f):
            if g >= 0: fill[g].append(("valu" + kind, t, f))
        fill[G0[f] + 17].append(("check", f, None))
    if qk != "none":
        for (g, kind, t) in softmax_sched(1-par, 0):
            if g < 0: fill[g + 32].append(("valu" + kind, t, "n"))
    if extra:
        for g, t in extra: fill[g].append(("raw", t, None))
    done = {0: [t for g, _, t in softmax_sched(par, 0) if g < 0], 1: [], "n": []}
    for g in range(32):
        if g == BAR and nextqk != "end":
            if sig:
                k("s_cmp_eq_u32 s44, 1\ns_cbranch_scc1 K2_sig")
                cx.ool.append(("K2_sig", ["s_waitcnt lgkmcnt(0) vmcnt(%d)" % cx.sigvm, "s_barrier"] + flag_store(1)))
            k("s_waitcnt lgkmcnt(0) vmcnt(%d)\ns_barrier" % vmw); lg.drain()
            if sig: k("K2_sig_b:")
            if sig2:
                k("s_cmp_eq_u32 s44, s79\ns_cbranch_scc1 K2_sig2\nK2_sig2_b:")
                cx.ool.append(("K2_sig2", flag_store(2)))
        w = lg.need(needs[g])
        if w: k(w)
        if mf[g]: k(mf[g])
        for kind, t, tag in sorted(fill[g], key=lambda x: {"lds": 0, "raw": 1, "valup": 2, "valuk": 3, "check": 4, "value": 5}[x[0]]):
            if kind == "check":
                f = t; cx.n += 1
                lab, back = "K2_rare%d" % cx.n, "K2_back%d" % cx.n
                k("s_cbranch_vccnz %s\n%s:" % (lab, back))
                li = L[1] if (pv == "single" or f == 1) else L[0]
                fill[g+1].insert(0, ("valup", "v_add_f32 v%d, v%d, v%d" % (li, li, TS[f]), None))
                redo = list(done[f])
                if pv == "single" and f == 0: redo += done[1]
                if f == 1 and qk == "single": redo += done["n"]
                cx.rare.append((lab, back, par, f, qk, pv, redo))
            else:
                k(t)
                if kind == "lds": lg.issue(tag)
                if kind in ("valup", "value") and tag is not None: done[tag].append(t)
        if g == 4:
            for on, sthr, blocks in ((prepA, 45, [(NEG[0], THR[0], 32)]), (prepB, 46, [(NEG[1], THR[1], 32), (NEG[2], THR[1], 32)])):
                if not on: continue
                cx.n += 1; lab = "K2_prep%d" % cx.n
                k("s_cmp_ge_i32 s44, s%d\ns_cbranch_scc1 %s\n%s_b:" % (sthr, lab, lab))
                body = []
                for neg, thr, dec in blocks:
                    body += prep_list(neg, thr)
                    body.append("v_add_f32 v%d, %s, v%d" % (thr, f32(-dec*BIG), thr))
                cx.ool.append((lab, body))
    if nextqk != "end": k("s_add_u32 s44, s44, 1")
    lg.q = [t[1:] if t[0] == "n" else t for t in lg.q]

def frag_epilogue(k, o, l, g1, soff, T, nb=4):
    t, r = RT, RT+1
    k("v_mov_b32 v%d, v%d\nv_permlane32_swap_b32 v%d, v%d\nv_add_f32 v%d, v%d, v%d\nv_rcp_f32 v%d, v%d\nv_mul_f32 v%d, v%d, v%d\nv_mov_b32 v%d, v%d" % (t, l, l, t, t, t, l, t, t, t, t, g1, r, t))
    for db in range(4):
        for c in range(2):
            b = T + 8*((db*2+c) % nb)
            for n in range(8): k("v_accvgpr_read_b32 v%d, a%d" % (b+n, o + 16*db + 8*c + n))
            for n in range(0, 8, 2): k("v_pk_mul_f32 v[%d:%d], v[%d:%d], v[%d:%d]" % (b+n, b+n+1, b+n, b+n+1, t, r))
            for n in range(4): k("v_cvt_pk_bf16_f32 v%d, v%d, v%d" % (b+n, b+2*n, b+2*n+1))
            k("buffer_store_dwordx4 %s, v%d, s[20:23], s%d offen offset:%d sc1" % (vr(b), VST, soff, c*512))
        if db < 3: k("s_add_u32 s%d, s%d, 8192" % (soff, soff))

def emit_ool(k, cx):
    for lab, body in cx.ool:
        k("%s:" % lab)
        for x in body: k(x)
        k("s_branch %s_b" % lab)
    for r in cx.rare: emit_rare(k, *r)

THRS = 39
def attention(k, cx, st, PQ, op, cpf=True, wpf_early=True, nw32=16, poll0=True):
    k("s_lshr_b32 s48, s2, 3")
    k("v_mov_b32 v%d, 0\nv_mov_b32 v%d, 0" % (L[0], L[1]))
    k("s_lshl_b32 s66, s52, 5\nv_add_u32 v13, s66, v3\nv_lshlrev_b32 v14, 2, v4\nv_sub_u32 v13, v13, v14\nv_cvt_f32_i32 v13, v13\nv_add_f32 v13, 0.5, v13")
    k("v_mul_f32 v%d, %s, v13\nv_mov_b32 v%d, v%d" % (THR[0], f32(BIG), THR[1], THR[0]))
    k("v_and_b32 v13, 15, v3\nv_lshlrev_b32 v13, 4, v13\nv_lshl_add_u32 v13, v4, 8, v13\nv_lshrrev_b32 v14, 4, v3\nv_lshl_add_u32 v13, v14, 10, v13\ns_lshl_b32 s66, s52, 11\nv_add_u32 v%d, s66, v13" % VST)
    k("s_mul_i32 s77, s54, %d\ns_mul_i32 s78, s55, %d\ns_lshl_b32 s66, s53, 15\ns_add_u32 s66, s66, 0x%x" % (160*8192, 160*8192, WS_CTX + 32*8192))
    k("s_add_u32 s69, s77, s66\ns_add_u32 s70, s78, s66")
    k("s_mov_b32 s39, %s\ns_mov_b32 s44, 0\ns_lshl_b32 s47, s54, 2\ns_sub_u32 s45, s47, 2\ns_mov_b32 s46, 30" % f32(65536.0))
    k("v_mov_b32 v%d, v%d\nv_add_u32 v%d, 0x4000, v%d\ns_mov_b32 s42, 0x8000" % (VI[0], VLANE16, VI[1], VLANE16))
    srd(k, 12, 82, 8 << 20); srd(k, 16, 80, 2 << 20)
    k("v_lshlrev_b32 v14, 7, v0\nv_lshlrev_b32 v15, 5, v0\ns_lshl_b32 s75, s2, 15\ns_lshl_b32 s76, s2, 13")
    k("s_lshl_b32 s66, s52, 13\ns_add_u32 s66, s66, 0x20000\nv_add_u32 v13, s66, v%d\ns_lshl_b32 s79, s54, 2\ns_add_u32 s79, s79, 5\ns_mov_b64 s[30:31], 0xff" % VLANE16)
    k("s_waitcnt vmcnt(3)\ns_barrier")
    lg = Lgkm()
    for n in range(8): k("ds_write_b128 v13, %s offset:%d" % (vr(PQ + 4*n), n*1024)); lg.issue(("PW", n))
    for t, tag in k_reads("dual", VI[1]): k(t); lg.issue(tag)
    k("v_sub_f32 v%d, 1.0, v%d\nv_sub_f32 v%d, 1.0, v%d" % (G1[0], G1[0], G1[1], G1[1]))
    dec = "v_add_f32 v%d, %s, v%d" % (THR[0], f32(-32*BIG), THR[0])
    k("s_cmp_eq_u32 s54, 0\ns_cbranch_scc1 K2_mask0\nK2_mask0_b:")
    cx.ool.append(("K2_mask0", prep_list(S(0, 0), THR[0]) + [dec]))
    for f in range(2):
        d = RT + 8 + 2*f
        rowmax(k, S(0, f), d, d + 1)
        k("v_mov_b32 v%d, v%d" % (d+1, d))
    for f in range(2):
        d = RT + 8 + 2*f
        for j in range(0, 16, 2): k("v_pk_add_f32 v[%d:%d], v[%d:%d], v[%d:%d] neg_lo:[0,1] neg_hi:[0,1]" % (S(0, f)+j, S(0, f)+j+1, S(0, f)+j, S(0, f)+j+1, d, d+1))
        if f == 1: k(lg.need({("PW", 7)}))
        for nb in ([NEG[0]] if f == 0 else [NEG[1], NEG[2]]):
            for j in range(0, 16, 2): k("v_pk_add_f32 v[%d:%d], v[%d:%d], 0 neg_lo:[1,0] neg_hi:[1,0]" % (nb+j, nb+j+1, d, d+1))
    k("s_cmp_eq_u32 s54, 0\ns_cbranch_scc1 K2_mask1\nK2_mask1_b:")
    cx.ool.append(("K2_mask1", prep_list(NEG[0], THR[0]) + [dec]))
    for g, _, t in softmax_sched(0, 0):
        if g < 0: k(t)
    st()
    stD = list(lg.q)
    k("s_lshl_b32 s47, s54, 1\ns_add_u32 s47, s47, 1")
    wpf = "buffer_load_dword v247, v14, s[12:15], s75 offen\nbuffer_load_dword v247, v15, s[16:19], s76 offen"
    cx.sigvm = 10 if wpf_early else 8
    step(cx, lg, 0, "dual", "dual", "dual", prepA=True, vmw=16, first=True, extra=[(0, wpf)] if wpf_early else None)
    st1 = list(lg.q)
    k("s_branch K2_loopD1")
    lg.q = list(stD)
    k("K2_loopD:")
    step(cx, lg, 0, "dual", "dual", "dual", prepA=True, vmw=16)
    assert lg.q == st1
    k("K2_loopD1:")
    step(cx, lg, 1, "dual", "dual", "dual", prepA=True, vmw=16, sig=True)
    assert lg.q == stD, (lg.q, stD)
    k("s_sub_u32 s47, s47, 1\ns_cmp_lg_u32 s47, 0\ns_cbranch_scc1 K2_loopD")
    poll = "buffer_load_dword v13, v1, s[20:23], s49 offen sc1"
    cp = codepf("K2_tail", 4, 5, 247, 48) if cpf else []
    for x in cp[:-1]: k(x)
    npf = len(cp[-1:]) + (0 if wpf_early else 2)
    copy2 = [(5 + j, "v_mov_b32 v%d, v%d" % (NEG[2]+j, NEG[1]+j)) for j in range(16)]
    step(cx, lg, 0, "dual", "dual", "single", prepB=True, vmw=13 + npf,
         extra=[(0, poll + ("" if wpf_early else "\n" + wpf) + "".join("\n" + x for x in cp[-1:]))])
    k("s_mul_i32 s71, s53, %d\ns_add_u32 s71, s71, 0x%x\ns_mul_i32 s72, s52, 3072\ns_add_u32 s72, s72, s71\ns_add_u32 s72, s72, 2048" % (8*12288, WS_KVP))
    k("s_lshr_b32 s66, s52, 1\ns_mul_i32 s66, s66, 6144\ns_add_u32 s71, s71, s66\ns_and_b32 s66, s52, 1\ns_lshl_b32 s66, s66, 10\ns_add_u32 s71, s71, s66")
    k("v_and_b32 v14, 7, v2\nv_mul_u32_u24 v14, 0x3000, v14\nv_add_u32 v14, v14, v%d\nv_and_b32 v15, 15, v2\nv_lshlrev_b32 v15, 2, v15" % VLANE16)
    k("s_waitcnt vmcnt(%d)" % (4 + npf))
    poll_check(k, cx, "K2_spin", 13, poll, 30)
    def kvd(p, tt): return vr(QA + (p*2+tt)*4) if p < 4 else vr(224 + ((p-4)*2+tt)*4, 4, "a")
    ex = []
    for p in range(8):
        for tt in range(2):
            ex.append("buffer_load_dwordx4 %s, v%d, s[20:23], s71 offen offset:%d sc1" % (kvd(p, tt), VLANE16, tt*3072) + ("\ns_add_u32 s71, s71, 12288" if tt else ""))
    ex.append("buffer_load_dwordx4 v[248:251], v14, s[20:23], s72 offen sc1")
    for mt in range(4):
        ex.append("buffer_load_dword v%d, v15, s[20:23], s%d offen offset:%d sc1" % (252+mt, 64 + (mt >> 1), (mt & 1)*64))
    step(cx, lg, 1, "single", "dual", "single", prepB=True, vmw=8+len(ex), extra=list(enumerate(ex)))
    stS = list(lg.q)
    st()
    frag_epilogue(k, OA, L[0], G1[0], 69, RT+8, nb=1)
    k("s_lshl_b32 s66, s52, 13\ns_add_u32 s66, s66, 0x20000\nv_add_u32 v13, s66, v%d\nv_lshrrev_b32 v14, 1, v%d\nv_add_u32 v15, s66, v14\nv_add_u32 v14, 0x20000, v14\nv_add_u32 v5, 0x20000, v%d" % (VLANE16, VLANE16, VLANE16))
    for n in range(8): k("ds_read_b128 %s, v13 offset:%d" % (vr(4*n, 4, "a"), n*1024))
    k("s_waitcnt vmcnt(8)")
    for p in range(1, 8):
        if p >= 4:
            for n in range(8): k("v_accvgpr_read_b32 v%d, a%d" % (RT+8+n, 224 + (p-4)*8 + n))
        src = QA + p*8 if p < 4 else RT+8
        for r in range(0, 8, 2): k("v_pk_add_f32 v[%d:%d], v[%d:%d], v[%d:%d]" % (QA+r, QA+r+1, QA+r, QA+r+1, src+r, src+r+1))
        if p <= 3:
            for r in range(4): k("v_add_f32_dpp v%d, v%d, v%d row_ror:%d row_mask:0xf bank_mask:0xf" % (248+r, 248+r, 248+r, 1 << (p-1)))
    for n in range(4): k("v_cvt_pk_bf16_f32 v%d, v%d, v%d" % (QA+n, QA+2*n, QA+2*n+1))
    k("v_cvt_pk_bf16_f32 v248, v248, v249\nv_cvt_pk_bf16_f32 v249, v250, v251")
    k("s_waitcnt lgkmcnt(0)\nds_write_b128 v13, %s\nds_write_b64 v15, v[248:249] offset:1024" % vr(QA))
    k("s_lshl_b32 s72, s53, 13\ns_lshl_b32 s73, s52, 11\ns_add_u32 s72, s72, s73\ns_add_u32 s72, s72, 0x%x\ns_add_u32 s73, s72, s77\ns_add_u32 s74, s72, s78" % WS_CTX)
    k("s_waitcnt lgkmcnt(0)\ns_barrier")
    AFR = 32
    for sg in range(2):
        for hb in range(2): k("ds_read_b64 a[%d:%d], v14 offset:%d" % (AFR + (4+sg)*4 + 2*hb, AFR + (4+sg)*4 + 2*hb + 1, (2*sg+hb)*8192 + 1024))
    for c in range(2):
        for sg in range(2): k("ds_read_b128 %s, v5 offset:%d" % (vr(AFR + (c*2+sg)*4, 4, "a"), (c + 2*sg)*8192))
    k("s_waitcnt lgkmcnt(0)")
    for c in (2, 0, 1):
        for mt in range(4):
            d = vr(RT + 4*mt) if c == 2 else vr(QA + mt*8 + c*4)
            for sg in range(2):
                k("v_mfma_f32_16x16x32_bf16 %s, %s, %s, %s" % (d, vr(AFR + (c*2+sg)*4, 4, "a"), vr((mt*2+sg)*4, 4, "a"), "0" if sg == 0 else d))
    for mt in range(4):
        dn = RT + 4*mt
        k("v_add_f32 v%d, %s, v%d\nv_rcp_f32 v%d, v%d\nv_mul_f32 v%d, v%d, v%d\nv_mov_b32 v%d, v%d" % (dn, f32(1e-6), dn, dn, dn, dn, dn, 252+mt, dn+1, dn))
    for mt in range(4):
        b = QA + mt*8; dn = RT + 4*mt
        for n in range(0, 8, 2): k("v_pk_mul_f32 v[%d:%d], v[%d:%d], v[%d:%d]" % (b+n, b+n+1, b+n, b+n+1, dn, dn+1))
        for n in range(4): k("v_cvt_pk_bf16_f32 v%d, v%d, v%d" % (b+n, b+2*n, b+2*n+1))
        k("buffer_store_dwordx4 %s, v%d, s[20:23], s%d offen offset:%d sc1" % (vr(b), VLANE16, 73 + (mt >> 1), (mt & 1)*1024))
    st()
    k("s_lshl_b32 s47, s54, 1\ns_sub_u32 s47, 14, s47\ns_cmp_eq_u32 s47, 0\ns_cbranch_scc1 K2_tail")
    k("K2_loopS:")
    step(cx, lg, 0, "single", "single", "single", prepB=True)
    step(cx, lg, 1, "single", "single", "single", prepB=True, sig2=True)
    assert lg.q == stS
    k("s_sub_u32 s47, s47, 1\ns_cmp_lg_u32 s47, 0\ns_cbranch_scc1 K2_loopS")
    k("K2_tail:")
    if st.fine == "op": st()
    k("s_and_b32 s60, s2, 6\ns_bfe_u32 s61, s2, 0x10003\ns_add_u32 s62, s60, s61\ns_sub_u32 s63, 14, s60\ns_add_u32 s63, s63, s61\ns_sub_u32 s66, 15, s63")
    k("s_bitcmp1_b32 s2, 4\ns_cselect_b32 s60, s63, s62\ns_cselect_b32 s59, s66, s62\ns_cselect_b32 s28, 0xf, 0\ns_mov_b32 s29, 0\ns_lshl_b32 s59, s59, 7")
    k("s_lshr_b32 s61, s2, 5\ns_and_b32 s62, s2, 1\ns_mov_b32 s49, 0x%x\ns_mov_b64 s[30:31], 0xf" % (WS_FLAG + 2*0x8000))
    op.setup(k)
    cx.ool.append(("K2_sig3", ["s_waitcnt vmcnt(0)", "s_barrier"] + flag_store(2)))
    k("s_cmp_eq_u32 s54, 7\ns_cbranch_scc1 K2_w7\ns_waitcnt vmcnt(0)\nK2_w7_b:\ns_barrier")
    cx.ool.append(("K2_w7", ["s_waitcnt vmcnt(12)"]))
    ew = op.early_w()
    h1 = nw32//2
    cx.ool[-2] = ("K2_sig3", ["s_waitcnt vmcnt(%d)" % h1, "s_barrier"] + flag_store(2, 3, 4))
    step(cx, lg, 0, "single", "single", "end", extra=([(0, poll)] if poll0 else []) + [(1 + (n*16)//h1, t) for n, t in enumerate(ew[:h1])] + [(17, "s_cmp_eq_u32 s54, 7\ns_cbranch_scc1 K2_sig3\nK2_sig3_b:")] + ([] if poll0 else [(18, poll)])
         + [(19 + (n*12)//h1, t) for n, t in enumerate(ew[h1:nw32])])
    if st.fine == "op": st()
    k("s_waitcnt vmcnt(%d)" % (nw32 if poll0 else h1))
    poll_check(k, cx, "K2_spin2", 13, poll, 30)
    k("s_barrier")
    if st.fine == "op": st()
    ex = ew[nw32:] + op.early_a()
    step(cx, lg, 1, "none", "single", "end", extra=[((n*31)//len(ex), t) for n, t in enumerate(ex)])
    st()
    frag_epilogue(k, OB, L[1], G1[1], 70, S(1, 0))
    k("s_cmp_eq_u32 s59, %d\ns_cbranch_scc1 K2_defer\nK2_defer_b:" % (7*128))
    body = ["s_waitcnt vmcnt(0)", "s_barrier"] + flag_store(3, 3, 4) + ["s_mov_b32 s30, s48", "s_mov_b32 s49, s44", "s_mov_b32 s88, 0", "K2_defer_l:", poll, "s_waitcnt vmcnt(0)", "v_cmp_ne_u32 vcc, s89, v13",
            "s_nop 0", "s_and_b64 vcc, vcc, s[30:31]", "s_cbranch_vccz K2_defer_g", "s_sleep 2", "s_add_u32 s88, s88, 1", "s_cmp_lt_u32 s88, 0x10000", "s_cbranch_scc1 K2_defer_l", "K2_defer_g:", "s_mov_b32 s35, s45"]
    for t in op.early_a(): body += t.split("\n")
    cx.ool.append(("K2_defer", body + ["s_waitcnt vmcnt(16)"]))
    st()
```

```python
from common import *
import k2
AR = 16
WFR = 144
VA = [248, 249, 250, 251]
WDV = [252, 253, 254, 255]
WRA = [[14, 15], [14, 15], [240, 241], [242, 243]]
WIMM = [0, 32768, 0, 0]
SM = [84, 85, 86, 87]
VL = 10
def acc(rt, nt): return (rt*8+nt)*4

def w_ops(slot):
    ops = []
    for ch in range(2):
        ops.append("s_add_u32 m0, s%d, %d" % (SM[slot], ch*4096))
        for p in range(4): ops.append("buffer_load_dwordx4 v%d, s[8:11], s%d offen offset:%d lds" % (WDV[p], 34 if ch == 0 else 42, p*1024))
        ops.append("s_add_u32 s%d, s%d, 0x10000" % ((34, 34) if ch == 0 else (42, 42)))
    return ops
def a_ops(slot):
    ops = ["s_add_u32 s35, s35, 8192"]
    for rt in range(8):
        ops.append("buffer_load_dwordx4 %s, v%d, s[20:23], s35 offen offset:%d sc1" % (vr(AR + slot*32 + rt*4), VA[rt >> 1], (rt & 1)*1024))
    return ops
def vmem_ops(slot): return w_ops(slot) + a_ops(slot)
def group(ops):
    out = []; cur = []
    for l in ops:
        cur.append(l)
        if l.startswith("buffer"):
            if len(cur) >= 2 and "m0" in cur[-2]: cur.insert(-1, "s_nop 0")
            out.append("\n".join(cur)); cur = []
    out[-1] += "".join("\n" + l for l in cur)
    return out
def w_reads(slot, par):
    out = []
    for nt in range(8):
        for hb in range(2):
            b = WFR + par*32 + nt*4 + 2*hb
            out.append(("ds_read_b64_tr_b16 v[%d:%d], v%d offset:%d" % (b, b+1, WRA[slot][(nt >> 1) & 1], WIMM[slot] + (nt >> 2)*4096 + hb*1024 + 8*(nt & 1)), ("W", nt)))
    return out

def setup(k):
    k("v_lshrrev_b32 v3, 3, v2\nv_and_b32 v4, 7, v2\nv_bfe_u32 v5, v3, 1, 1\nv_lshlrev_b32 v5, 2, v5\nv_xor_b32 v4, v4, v5\nv_lshlrev_b32 v4, 4, v4\nv_lshl_add_u32 v4, v3, 11, v4")
    k("s_lshl_b32 s55, s61, 8\nv_add_u32 v%d, s55, v4" % WDV[0])
    for p in range(1, 4): k("v_add_u32 v%d, %d, v%d" % (WDV[p], p*15360, WDV[0]))
    for lp in range(4):
        k("s_add_u32 s55, s52, %d\ns_and_b32 s55, s55, 3\ns_lshl_b32 s55, s55, 11\nv_add_u32 v%d, s55, v%d" % (lp, VA[lp], VL))
    k("s_lshl_b32 s57, s62, 4\ns_lshl_b32 s55, s52, 2\ns_add_u32 s57, s57, s55")
    k("s_mul_i32 s56, s60, %d\ns_add_u32 s56, s56, 0x%x\ns_lshl_b32 s55, s57, 13\ns_add_u32 s35, s56, s55" % (160*8192, WS_CTX - 8192))
    k("s_lshl_b32 s55, s57, 15\ns_add_u32 s40, s56, s55\ns_add_u32 s40, s40, %d" % (32*8192))
    k("s_lshl_b32 s63, s62, 7\ns_xor_b32 s55, s63, 128")
    k("s_lshl_b32 s34, s57, 16\ns_add_u32 s42, s34, s63\ns_add_u32 s34, s34, s55\ns_lshl_b32 s41, s57, 18\ns_add_u32 s43, s41, s63\ns_add_u32 s41, s41, s55")
    k("s_and_b32 s55, s54, 1\ns_lshl_b32 s55, s55, 16\ns_lshl_b32 s46, s52, 13\ns_add_u32 s84, s55, s46\ns_add_u32 s85, s84, 0x8000\ns_add_u32 s86, s46, 0x20000\ns_xor_b32 s87, s84, 0x10000")
    k("s_mov_b32 s8, s16\ns_mov_b32 s9, s17\ns_mov_b32 s10, s18\ns_mov_b32 s11, 0x20000")
    k("v_lshrrev_b32 v3, 5, v2\nv_lshlrev_b32 v3, 11, v3\nv_bfe_u32 v4, v2, 2, 3\nv_lshl_add_u32 v3, v4, 7, v3")
    k("v_bfe_u32 v4, v2, 3, 1\nv_lshlrev_b32 v4, 2, v4\nv_and_b32 v5, 3, v2\nv_or_b32 v4, v4, v5\nv_lshl_add_u32 v5, v4, 4, v3\nv_xor_b32 v4, 4, v4\nv_lshl_add_u32 v4, v4, 4, v3")
    for sl in (0, 2, 3): k("v_add_u32 v%d, s%d, v5\nv_add_u32 v%d, s%d, v4" % (WRA[sl][0], SM[sl], WRA[sl][1], SM[sl]))
    k("s_lshl_b32 s55, s57, 10\ns_add_u32 s55, s55, s59\nv_min_u32 v1, 3, v2\nv_lshlrev_b32 v1, 10, v1\nv_add_u32 v1, s55, v1")
    k("s_add_u32 s47, s2, 1\ns_and_b32 s47, s47, 3")
    k("s_mov_b32 s98, s35\ns_mov_b32 s99, s34\ns_mov_b32 s100, s42\ns_mov_b32 s101, 99\ns_mov_b32 s44, 0x%x" % (WS_FLAG + 3*0x8000))
    k("s_cmp_lg_u32 s59, %d\ns_cbranch_scc1 K3_notp7" % (7*128))
    k("s_mov_b32 s8, s12\ns_mov_b32 s9, s13\ns_mov_b32 s10, s14\ns_mov_b32 s101, 3\ns_mov_b32 s30, 0")
    k("s_cmp_eq_u32 s28, 0\ns_cselect_b32 s44, s49, s44\ns_mov_b32 s28, 0xf")
    k("s_lshl_b32 s55, s47, 15\ns_add_u32 s45, s40, s55\ns_lshl_b32 s55, s47, 18\ns_add_u32 s34, s41, s55\ns_add_u32 s42, s43, s55\ns_mov_b32 s35, 0x%x" % BIGOFF)
    k("s_lshl_b32 s48, 1, s47\ns_add_u32 s47, s47, 1\ns_and_b32 s47, s47, 3")
    k("K3_notp7:")

def early_w():
    ops = []
    for b in range(3): ops += w_ops(b)
    return group(ops)
def early_a():
    ops = []
    for b in range(3): ops += a_ops(b)
    return group(ops)

def outproj(k, cx, st):
    k("s_mov_b32 s49, s44\ns_mov_b32 s45, 0\ns_waitcnt vmcnt(32)")
    lg = Lgkm()
    for t, tag in w_reads(0, 0): k(t); lg.issue(tag)
    poll = "buffer_load_dword v13, v1, s[20:23], s49 offen sc1"
    def block(slot, par, loads, vm, first=False, pre=None, rd=True, selfrd=False):
        if vm is not None: k("s_waitcnt vmcnt(%d)" % vm)
        if pre: pre()
        if selfrd:
            for t, tag in w_reads(slot, par): k(t); lg.issue(tag)
        fill = [[] for _ in range(64)]
        if rd:
            for n, (t, tag) in enumerate(w_reads((slot+1) % 4, 1-par)): fill[2 + (n*56)//16].append(("lds", t, ("n",)+tag))
        ops = []
        for s_ in loads: ops += vmem_ops(s_)
        nv = sum(l.startswith("buffer") for l in ops)
        free = [g for g in range(1, 63) if not fill[g]]
        dense = nv > len(free)
        if dense: free = list(range(1, 63))
        n = 0; pend = []
        for l in ops:
            if l.startswith("buffer"):
                g = free[(n*len(free))//nv]; n += 1
                for p in pend: fill[g-1].append(("raw", p, None))
                pend = []
                fill[g].append(("raw", l, None))
            else: pend.append(l)
        assert not pend
        for g in range(64):
            nt, rt = divmod(g, 8)
            if rt == 0:
                w = lg.need({("W", nt)})
                if w: k(w)
            a = vr(acc(rt, nt), 4, "a")
            k("v_mfma_f32_16x16x32_bf16 %s, %s, %s, %s" % (a, vr(WFR + par*32 + nt*4), vr(AR + slot*32 + rt*4), "0" if first else a))
            for kind, t, tag in sorted(fill[g], key=lambda x: (x[0] != "lds", not x[1].startswith("buffer"))):
                k(t)
                if kind == "lds": lg.issue(tag)
        lg.q = [t[1:] if t[0] == "n" else t for t in lg.q]
        if st.fine == "blk" and not inloop[0]: st()
    inloop = [False]
    st()
    def nexthead(name, first=False):
        def f():
            if first:
                k("s_barrier")
                for x in k2.flag_store(3, 3, 4): k(x)
                k("s_mov_b32 s8, s12\ns_mov_b32 s9, s13\ns_mov_b32 s10, s14")
            k("s_lshl_b32 s30, 1, s47\ns_and_b32 s30, s30, s28")
            k2.poll_check(k, cx, name, 13, poll, 30)
            k("s_lshl_b32 s55, s47, 15\ns_add_u32 s35, s40, s55\ns_lshl_b32 s55, s47, 18\ns_add_u32 s34, s41, s55\ns_add_u32 s42, s43, s55\ns_add_u32 s47, s47, 1\ns_and_b32 s47, s47, 3")
            if not first:
                k("s_cmp_eq_u32 s45, s101\ns_cselect_b32 s35, s98, s35\ns_cselect_b32 s34, s99, s34\ns_cselect_b32 s42, s100, s42\ns_cselect_b32 s8, s16, s8\ns_cselect_b32 s9, s17, s9\ns_cselect_b32 s10, s18, s10")
            if not first: k("s_cmp_eq_u32 s45, 4\ns_cselect_b32 s35, 0x%x, s35\ns_cselect_b32 s34, 0x%x, s34\ns_cselect_b32 s42, 0x%x, s42" % (BIGOFF, BIGOFF, BIGOFF))
        return f
    block(0, 0, [3], 24, first=True, pre=lambda: k(poll))
    block(1, 1, [0], 16, pre=nexthead("K3_spin", True))
    block(2, 0, [1], 25)
    block(3, 1, [2], 24)
    st0 = list(lg.q)
    k("s_mov_b32 s45, 1")
    k("K3_loop:")
    inloop[0] = True
    block(0, 0, [3], 24, pre=lambda: k(poll))
    block(1, 1, [0], 16, pre=nexthead("K3_spinl"))
    block(2, 0, [1], 24)
    block(3, 1, [2], 24)
    assert lg.q == st0
    k("s_add_u32 s45, s45, 1\ns_cmp_lt_u32 s45, 5\ns_cbranch_scc1 K3_loop")
    k("s_mov_b32 s30, 0xf")
    st()
    srd(k, 24, 96, 2048*1024*2)
    for lp in range(1, 4):
        k("s_add_u32 s55, s52, %d\ns_and_b32 s55, s55, 3\ns_mul_i32 s55, s55, 24576\ns_add_u32 s55, s55, %d\nv_add_u32 v%d, s55, v%d" % (lp, (lp-1)*8192, 16+lp, VL))
    k("s_mul_i32 s55, s52, 24576\nv_add_u32 v16, s55, v%d" % VL)
    k("s_lshl_b32 s55, s2, 2\ns_add_u32 s55, s55, s52\ns_lshl_b32 s55, s55, 13\ns_add_u32 s56, s55, 0x%x\ns_xor_b32 s55, s55, 0x8000\ns_add_u32 s57, s55, 0x%x\ns_add_u32 s58, s56, 4096\ns_add_u32 s59, s57, 4096" % (WS_XCH, WS_XCH))
    k("s_xor_b32 s55, s33, 1024\ns_and_b32 s63, s2, 31\ns_xor_b32 s63, s63, 1\ns_lshl_b32 s63, s63, 10\ns_lshl_b32 s55, s54, 7\ns_add_u32 s63, s63, s55\nv_mov_b32 v1, s63\ns_mov_b32 s49, 0x%x" % (WS_FLAG + 5*0x8000))
    def writes(r):
        for lp in range(1, 4):
            for t in range(8): k("ds_write_b128 v%d, %s offset:%d" % (16+lp, vr(acc(2*lp + (t >> 2), 4*r + (t & 3)), 4, "a"), t*1024))
    def reads(base):
        for n in range(24): k("ds_read_b128 %s, v16 offset:%d" % (vr(base + 4*n), n*1024))
    def own(r, dst):
        for t in range(8):
            for n in range(4): k("v_accvgpr_read_b32 v%d, a%d" % (dst + 4*t + n, acc(t >> 2, 4*r + (t & 3)) + n))
    def adds(dst, base):
        for s_ in range(3):
            for r in range(0, 32, 2): k("v_pk_add_f32 v[%d:%d], v[%d:%d], v[%d:%d]" % (dst+r, dst+r+1, dst+r, dst+r+1, base+32*s_+r, base+32*s_+r+1))
    k("s_waitcnt vmcnt(0) lgkmcnt(0)\ns_barrier")
    if st.fine == "op": st()
    writes(0); own(0, 32)
    k("s_waitcnt lgkmcnt(0)\ns_barrier")
    if st.fine == "op": st()
    reads(64); own(1, 160)
    for s_ in range(3):
        k("s_waitcnt lgkmcnt(%d)" % min(15, 16 - 8*s_))
        for r in range(0, 32, 2): k("v_pk_add_f32 v[%d:%d], v[%d:%d], v[%d:%d]" % (32+r, 33+r, 32+r, 33+r, 64+32*s_+r, 65+32*s_+r))
    for t in range(8): k("buffer_store_dwordx4 %s, v%d, s[20:23], s%d offen offset:%d sc1" % (vr(32 + 4*t), VL, 56 if t < 4 else 58, (t & 3)*1024))
    k("s_barrier")
    if st.fine == "op": st()
    writes(1)
    k("s_waitcnt lgkmcnt(0)\ns_barrier")
    if st.fine == "op": st()
    reads(64)
    k("s_waitcnt vmcnt(0)\ns_barrier")
    for x in k2.flag_store(5): k(x)
    st()
    k("s_lshl_b32 s55, s60, 18\ns_lshl_b32 s56, s52, 16\ns_add_u32 s55, s55, s56\ns_lshl_b32 s56, s61, 8\ns_add_u32 s55, s55, s56\ns_lshl_b32 s56, s62, 7\ns_add_u32 s55, s55, s56\ns_add_u32 s56, s55, 0x8000")
    k("v_and_b32 v5, 15, v2\nv_lshlrev_b32 v5, 11, v5\nv_lshrrev_b32 v13, 4, v2\nv_lshl_add_u32 v4, v13, 4, v5")
    k(poll)
    k("s_waitcnt lgkmcnt(0)")
    adds(160, 64)
    k("s_waitcnt vmcnt(0)")
    k2.poll_check(k, cx, "K3_spin2", 13, poll, 30)
    st()
    for t in range(8): k("buffer_load_dwordx4 %s, v%d, s[20:23], s%d offen offset:%d sc1" % (vr(64 + 4*t), VL, 57 if t < 4 else 59, (t & 3)*1024))
    for q in range(4):
        b = 160 + 8*q
        k("s_waitcnt vmcnt(%d)" % (6 - 2*q + q))
        for r in range(0, 8, 2): k("v_pk_add_f32 v[%d:%d], v[%d:%d], v[%d:%d]" % (b+r, b+r+1, b+r, b+r+1, 64+8*q+r, 65+8*q+r))
        for n in range(4): k("v_cvt_pk_bf16_f32 v%d, v%d, v%d" % (b+n, b+2*n, b+2*n+1))
        k("buffer_store_dwordx4 %s, v4, s[24:27], s%d offen offset:%d" % (vr(b), 55 + (q >> 1), (q & 1)*64))
    st()
    if st.on: k("s_waitcnt vmcnt(0)")
    st()
```
